```python
import torch

def _softmax(x, axis=-1):
    return torch.softmax(x, dim=axis)
def _gelu(x):
    return torch.nn.functional.gelu(x, approximate="tanh")
def _silu(x):
    return torch.nn.functional.silu(x)
def _sigmoid(x):
    return torch.sigmoid(x)
def _layernorm(x, axis=-1, eps=1e-5):
    m = x.mean(dim=axis, keepdim=True)
    v = x.var(dim=axis, keepdim=True, unbiased=False)
    return (x - m) / torch.sqrt(v + eps)
def _scatter_add(tgt, idx, src, axis=0):
    return tgt.clone().index_add_(axis, idx, src)
def _segment_sum(src, seg, n):
    out = torch.zeros((n,) + src.shape[1:], dtype=src.dtype)
    return out.index_add_(0, seg, src)
def _pad(x, pw):
    flat = tuple(v for pair in reversed(pw) for v in pair)
    return torch.nn.functional.pad(x, flat)

kernel_name = 'gated_mix__softmax_full_mha__grouped_kv_mqa__prompt'

def setup_inputs():

    _w = (lambda a: (lambda t: t.to(torch.bfloat16) if t.is_floating_point() else t)(torch.as_tensor(a)))
    def _A_setup():
        B, S, D = 1, 2048, 576
        return {
            "x": _w((lambda *s: torch.randn(*s, dtype=torch.bfloat16) * 0.1)(B, S, D)),
            "wqkv": _w((lambda *s: torch.randn(*s, dtype=torch.bfloat16) * 0.4)(D, 3 * D)),
            "wo": _w((lambda *s: torch.randn(*s, dtype=torch.bfloat16) * 0.2)(D, D)),
        }
    _A_in = _A_setup()

    def _B_setup():
        B, S, D, H = 1, 2048, 576, 32
        Dh = D // H
        return {
            "x": _w((lambda *s: torch.randn(*s, dtype=torch.bfloat16) * 0.1)(B, S, D)),
            "wq": _w((lambda *s: torch.randn(*s, dtype=torch.bfloat16) * 0.4)(D, H * Dh)),
            "wk": _w((lambda *s: torch.randn(*s, dtype=torch.bfloat16) * 0.4)(D, Dh)),
            "wv": _w((lambda *s: torch.randn(*s, dtype=torch.bfloat16) * 0.4)(D, Dh)),
            "wo": _w((lambda *s: torch.randn(*s, dtype=torch.bfloat16) * 0.4)(H * Dh, D)),
        }
    _B_in = _B_setup()

    return {
        "A_x": _A_in["x"],
        "A_wqkv": _A_in["wqkv"],
        "A_wo": _A_in["wo"],
        "B_x": _B_in["x"],
        "B_wq": _B_in["wq"],
        "B_wk": _B_in["wk"],
        "B_wv": _B_in["wv"],
        "B_wo": _B_in["wo"],
        "gate_w": _w((lambda *s: torch.randn(*s, dtype=torch.bfloat16) * 0.1)(576) * 16.0),
    }

def reference(A_x, A_wqkv, A_wo, B_x, B_wq, B_wk, B_wv, B_wo, gate_w):
    def _A_ref(x, wqkv, wo):
        B, S, D = x.shape
        H = 32; Dh = D // H
        qkv = (lambda x, *d: x.permute(*d))((x @ wqkv).reshape(B, S, 3, H, Dh), 2, 0, 3, 1, 4)
        q, k, v = qkv[0], qkv[1], qkv[2]
        scale = Dh ** -0.5
        scores = torch.einsum("bhqd,bhkd->bhqk", q, k) * scale
        p = _softmax(scores, axis=-1)
        o = torch.einsum("bhqk,bhkd->bhqd", p, v)
        return (lambda x, *d: x.permute(*d))(o, 0, 2, 1, 3).reshape(B, S, D) @ wo

    def _B_ref(x, wq, wk, wv, wo):
        B, S, D = x.shape
        H = 32
        Dh = D // H
        q = (lambda x, *d: x.permute(*d))((x @ wq).reshape(B, S, H, Dh), 0, 2, 1, 3)
        k = x @ wk
        v = x @ wv
        scores = torch.einsum("bhqd,bkd->bhqk", q, k) * (Dh ** -0.5)
        p = _softmax(scores, axis=-1)
        o = torch.einsum("bhqk,bkd->bhqd", p, v)
        return (lambda x, *d: x.permute(*d))(o, 0, 2, 1, 3).reshape(B, S, H * Dh) @ wo

    x = A_x
    g = _sigmoid((x * gate_w).sum(-1, keepdims=True))
    a = _A_ref(x, A_wqkv, A_wo)
    b = _B_ref(x, B_wq, B_wk, B_wv, B_wo)
    return g * a + (1 - g) * b
```

```python
import math, struct, sys

NAME = "gated_mix__softmax_full_mha__grouped_kv_mqa__prompt"

IMG   = 147456
CHUNK = 18432
KV_OFF = 0
QM_OFF = 0x500000
QL_OFF = 0x900000
G_OFF  = 0x980000
WF_OFF = 0xA00000
O_OFF  = 0xC00000
WS_SIZE = 0x1100000
X_BYTES = 2048*576*2

def f32bits(x): return struct.unpack("<I", struct.pack("<f", x))[0]
QSCALE = f32bits((18 ** -0.5) * math.log2(math.e))

class Em:
    def __init__(self): self.L = []
    def __call__(self, s=""):
        for line in s.split("\n"):
            line = line.strip()
            if not line: continue
            if line.endswith(":") or line.startswith("."):
                self.L.append(line)
            else:
                self.L.append("    " + line)
    def text(self): return "\n".join(self.L) + "\n"

def vr(a, n=1): return f"v{a}" if n == 1 else f"v[{a}:{a+n-1}]"
def ar(a, n=1): return f"a{a}" if n == 1 else f"a[{a}:{a+n-1}]"
def sr(a, n=1): return f"s{a}" if n == 1 else f"s[{a}:{a+n-1}]"

def srd(e, d, lo, hi, nbytes):
    e(f"s_mov_b32 s{d}, s{lo}")
    e(f"s_mov_b32 s{d+1}, s{hi}")
    e(f"s_mov_b32 s{d+2}, {nbytes}")
    e(f"s_mov_b32 s{d+3}, 0x00020000")

def khead(e, name):
    e(f".globl {name}")
    e(".p2align 8")
    e(f".type {name},@function")
    e(f"{name}:")

def kdesc(name, nvgpr, accum, nsgpr=96):
    return f""".p2align 6
.amdhsa_kernel {name}
  .amdhsa_next_free_vgpr {nvgpr}
  .amdhsa_next_free_sgpr {nsgpr}
  .amdhsa_accum_offset {accum}
  .amdhsa_group_segment_fixed_size 0
  .amdhsa_kernarg_size 96
  .amdhsa_user_sgpr_count 2
  .amdhsa_user_sgpr_kernarg_segment_ptr 1
  .amdhsa_system_sgpr_workgroup_id_x 1
.end_amdhsa_kernel
"""

STAGE = 36864
def gen_k1(e):
    khead(e, "proj_kernel")
    e("""
    s_cmp_ge_u32 s2, 256
    s_cbranch_scc1 K1_END
    s_load_dwordx4 s[4:7], s[0:1], 0
    s_load_dwordx4 s[8:11], s[0:1], 32
    s_load_dwordx2 s[12:13], s[0:1], 48
    s_load_dwordx2 s[14:15], s[0:1], 64
    s_load_dwordx2 s[16:17], s[0:1], 88
    v_lshrrev_b32 v1, 6, v0
    v_and_b32 v0, 63, v0
    s_and_b32 s18, s2, 7
    v_readfirstlane_b32 s3, v1
    s_lshr_b32 s19, s2, 3
    s_and_b32 s28, s18, 1
    s_lshl_b32 s28, s28, 3
    s_and_b32 s29, s19, 7
    s_add_u32 s28, s28, s29
    s_lshr_b32 s29, s18, 1
    s_lshl_b32 s29, s29, 2
    s_lshr_b32 s30, s19, 3
    s_add_u32 s29, s29, s30
    """)
    e("s_waitcnt lgkmcnt(0)")
    srd(e, 40, 16, 17, WS_SIZE)
    e("""
    s_cmp_ge_u32 s3, 4
    s_cbranch_scc1 K1_LOADER
    """)
    e("""
    v_and_b32 v1, 31, v0
    v_lshrrev_b32 v2, 5, v0
    v_bfe_u32 v3, v0, 4, 1
    v_bfe_u32 v4, v0, 2, 2
    v_and_b32 v5, 3, v0
    s_lshr_b32 s30, s29, 2
    """)
    e("""
    v_lshl_add_u32 v6, v2, 3, v4
    v_mul_u32_u24 v6, 320, v6
    v_add_u32 v6, 16384, v6
    v_lshlrev_b32 v7, 3, v5
    s_cmp_eq_u32 s30, 2
    s_cbranch_scc1 K1_VTYPE
    """)
    XB, WB0, WB3, WB4 = 8, 9, 10, 11
    XA = 12
    WA0, WA3, WA4 = 16, 17, 18
    F = [24, 48]
    ACC = 72
    for vtype in (0, 1):
        tag = "V" if vtype else "Q"
        if vtype: e("K1_VTYPE:")
        if vtype:
            e("""
            v_and_b32 v19, 0x13, v1
            v_bfe_u32 v20, v1, 2, 1
            v_lshl_or_b32 v19, v20, 3, v19
            v_bfe_u32 v20, v1, 3, 1
            v_lshl_or_b32 v19, v20, 2, v19
            """)
        else:
            e("v_mov_b32 v19, v1")
        e(f"""
        v_bfe_u32 v20, v19, 1, 3
        v_xor_b32 v20, v20, v2
        v_lshlrev_b32 v20, 4, v20
        v_lshl_add_u32 v{XB}, v19, 7, v20
        s_lshl_b32 s31, s3, 12
        v_add_u32 v{XB}, s31, v{XB}
        """)
        if vtype:
            e(f"""
            v_lshl_add_u32 v{WB0}, v3, 5, v7
            v_add_u32 v{WB0}, v{WB0}, v6
            """)
        else:
            e(f"""
            v_lshl_add_u32 v{WB0}, v3, 5, v7
            v_add3_u32 v{WB0}, v{WB0}, v6, 40
            v_mul_u32_u24 v{WB3}, 288, v3
            v_add3_u32 v{WB3}, v{WB3}, v6, v7
            v_mul_u32_u24 v20, 72, v5
            v_add_u32 v20, 32, v20
            v_add_u32 v21, 256, v7
            v_cmp_eq_u32 vcc, 1, v3
            s_nop 1
            v_cndmask_b32 v20, v20, v21, vcc
            v_add_u32 v{WB4}, v20, v6
            """)
        for i in range(80):
            e(f"v_mov_b32 v{ACC+i}, 0")
        def setaddr():
            e(f"v_add_u32 v{XA}, s32, v{XB}")
            e(f"v_add_u32 v{WA0}, s32, v{WB0}")
            if not vtype:
                e(f"v_add_u32 v{WA3}, s32, v{WB3}")
                e(f"v_add_u32 v{WA4}, s32, v{WB4}")
            for ks in range(1, 4):
                e(f"v_xor_b32 v{XA+ks}, {32*ks}, v{XA}")
        def reads(ks, fs):
            R = [f"ds_read_b128 {vr(fs,4)}, v{XA+ks}"]
            for t in range(5):
                for q in range(2):
                    imm = (16*ks + 4*q) * 320
                    if vtype:
                        a = WA0; imm += 64*t
                    elif t < 3:
                        a = WA0; imm += 72*t
                    else:
                        a = WA3 if t == 3 else WA4
                    R.append(f"ds_read_b64_tr_b16 {vr(fs+4+4*t+2*q,2)}, v{a} offset:{imm}")
            return R
        def mfma(t, fs):
            xw = (vr(fs,4), vr(fs+4+4*t,4))
            a, b = (xw if vtype else xw[::-1])
            return f"v_mfma_f32_32x32x16_bf16 {vr(ACC+16*t,16)}, {a}, {b}, {vr(ACC+16*t,16)}"
        e("s_mov_b32 s32, 0")
        e("s_mov_b32 s33, 0")
        setaddr()
        e("s_barrier")
        for r in reads(0, F[0]): e(r)
        e(f"K1_LOOP_{tag}:")
        for ks in range(3):
            cur, nxt = F[ks & 1], F[(ks+1) & 1]
            R = reads(ks+1, nxt)
            split = [R[0:3], R[3:6], R[6:9], R[9:11], []]
            waits = [8, 9, 10, 11, 11]
            for t in range(5):
                e(f"s_waitcnt lgkmcnt({waits[t]})")
                e(mfma(t, cur))
                for r in split[t]: e(r)
        cur, nxt = F[1], F[0]
        e("s_waitcnt lgkmcnt(8)")
        e(mfma(0, cur))
        e("s_add_u32 s33, s33, 1")
        e("s_add_u32 s32, s32, %d" % STAGE)
        e("s_cmp_eq_u32 s32, %d" % (4*STAGE))
        e("s_cselect_b32 s32, 0, s32")
        e("s_waitcnt lgkmcnt(6)")
        e(mfma(1, cur))
        e("s_cmp_eq_u32 s33, 9")
        e("s_waitcnt lgkmcnt(0)")
        e(f"s_cbranch_scc1 K1_TAIL_{tag}")
        setaddr()
        e("s_barrier")
        R = reads(0, nxt)
        for r in R[0:5]: e(r)
        e(mfma(2, cur))
        for r in R[5:9]: e(r)
        e(mfma(3, cur))
        for r in R[9:11]: e(r)
        e(mfma(4, cur))
        e(f"s_branch K1_LOOP_{tag}")
        e(f"K1_TAIL_{tag}:")
        for t in (2, 3, 4): e(mfma(t, cur))
        e("""
        s_lshl_b32 s34, s28, 2
        s_add_u32 s34, s34, s3
        s_lshr_b32 s35, s34, 3
        s_mul_i32 s35, s35, %d
        s_and_b32 s36, s34, 7
        s_and_b32 s37, s29, 3
        s_lshl_b32 s37, s37, 3
        """ % CHUNK)
        P = 24
        if not vtype:
            e(f"""
            s_mul_i32 s44, s37, {IMG}
            s_add_u32 s44, s44, s35
            s_lshl_b32 s45, s36, 10
            s_add_u32 s46, s44, s45
            s_lshl_b32 s45, s36, 7
            s_add_u32 s47, s44, s45
            s_add_u32 s47, s47, 8192
            s_mov_b32 s48, {IMG}
            s_mov_b32 s49, {IMG}
            s_mov_b32 s50, 1.0
            s_cmp_eq_u32 s30, 1
            s_cbranch_scc1 K1_EPQ_K
            s_cmp_eq_u32 s30, 3
            s_cselect_b32 s44, 32, 0
            s_add_u32 s44, s44, s37
            s_lshl_b32 s46, s44, 16
            s_lshl_b32 s45, s34, 10
            s_add_u32 s46, s46, s45
            s_add_u32 s46, s46, {QM_OFF}
            s_lshl_b32 s47, s44, 13
            s_lshl_b32 s45, s34, 7
            s_add_u32 s47, s47, s45
            s_add_u32 s47, s47, {QL_OFF}
            s_mov_b32 s48, 65536
            s_mov_b32 s49, 8192
            s_mov_b32 s50, {QSCALE:#x}
            K1_EPQ_K:
            v_lshlrev_b32 v8, 4, v0
            s_lshl_b32 s45, s49, 1
            v_mul_lo_u32 v9, v2, s45
            v_lshl_add_u32 v9, v1, 2, v9
            """)
            heads = [(1,2),(3,4),(5,6),(0,7)]
            for t in range(5):
                for i in range(16):
                    e(f"v_mul_f32 v{ACC+16*t+i}, s50, v{ACC+16*t+i}")
                for i in range(8):
                    e(f"v_cvt_pk_bf16_f32 v{P+8*t+i}, v{ACC+16*t+2*i}, v{ACC+16*t+2*i+1}")
                if t < 4:
                    for half in range(2):
                        e(f"s_mul_i32 s51, s48, {heads[t][half]}")
                        e("s_add_u32 s51, s51, s46")
                        e(f"buffer_store_dwordx4 {vr(P+8*t+4*half,4)}, v8, s[40:43], s51 offen")
                else:
                    for i in range(2):
                        for eo in range(2):
                            e(f"s_mul_i32 s51, s49, {4*i+eo}")
                            e("s_add_u32 s51, s51, s47")
                            e(f"buffer_store_dword v{P+32+2*i+eo}, v9, s[40:43], s51 offen")
            e(f"""
            s_and_b32 s44, s29, 14
            s_cmp_lg_u32 s44, 4
            s_cbranch_scc1 K1_END
            s_and_b32 s44, s29, 1
            s_add_u32 s45, s44, 32
            s_mul_i32 s45, s45, {IMG}
            s_add_u32 s45, s45, s35
            s_lshl_b32 s51, s36, 10
            s_add_u32 s45, s45, s51
            buffer_store_dwordx4 {vr(P+36,4)}, v8, s[40:43], s45 offen
            s_sub_u32 s45, 33, s44
            s_mul_i32 s45, s45, {IMG}
            s_add_u32 s45, s45, s35
            s_lshl_b32 s51, s36, 7
            s_add_u32 s45, s45, s51
            s_add_u32 s45, s45, 8192
            v_cmp_eq_u32 vcc, 1, v2
            v_lshlrev_b32 v10, 2, v1
            v_mov_b32 v11, 0x7ffffff0
            v_cndmask_b32 v12, v{P+36}, v{P+39}, vcc
            v_cmp_eq_u32 vcc, s44, v2
            s_nop 1
            v_cndmask_b32 v10, v11, v10, vcc
            buffer_store_dword v12, v10, s[40:43], s45 offen
            s_branch K1_END
            """)
        else:
            e(f"""
            s_mul_i32 s45, s36, 1152
            s_add_u32 s45, s45, s35
            s_add_u32 s45, s45, 9216
            s_mul_i32 s44, s37, {IMG}
            s_add_u32 s46, s44, s45
            s_mov_b32 s48, {IMG - 18*16}
            v_mul_u32_u24 v8, 288, v2
            """)
            for t in range(5):
                e(f"v_add_u32 v9, {32*t if t < 4 else 112}, v1")
                e("v_mul_u32_u24 v10, 3641, v9")
                e("v_lshrrev_b32 v10, 16, v10")
                e("v_mul_lo_u32 v10, v10, s48")
                e("v_lshl_add_u32 v9, v9, 4, v8")
                e(f"v_add_u32 v{12+t}, v9, v10")
                if t == 4:
                    e("v_mov_b32 v11, 0x7ffffff0")
                    e("v_cmp_le_u32 vcc, 16, v1")
                    e("s_nop 1")
                    e(f"v_cndmask_b32 v{12+t}, v11, v{12+t}, vcc")
                for i in range(8):
                    e(f"v_cvt_pk_bf16_f32 v{P+8*t+i}, v{ACC+16*t+2*i}, v{ACC+16*t+2*i+1}")
                for half in range(2):
                    e(f"buffer_store_dwordx4 {vr(P+8*t+4*half,4)}, v{12+t}, s[40:43], s46 offen offset:{576*half}")
            e(f"""
            s_and_b32 s44, s29, 14
            s_cmp_lg_u32 s44, 8
            s_cbranch_scc1 K1_END
            s_and_b32 s44, s29, 1
            s_lshl_b32 s44, s44, 5
            s_add_u32 s45, s45, s44
            s_add_u32 s45, s45, {32*IMG}
            s_add_u32 s46, s45, {IMG}
            v_lshl_add_u32 v9, v1, 4, v8
            v_cndmask_b32 v9, v9, v11, vcc
            buffer_store_dwordx4 {vr(P+32,4)}, v9, s[40:43], s45 offen
            buffer_store_dwordx4 {vr(P+36,4)}, v9, s[40:43], s45 offen offset:576
            buffer_store_dwordx4 {vr(P+32,4)}, v9, s[40:43], s46 offen
            buffer_store_dwordx4 {vr(P+36,4)}, v9, s[40:43], s46 offen offset:576
            s_branch K1_END
            """)
    e("K1_LOADER:")
    e("s_sub_u32 s3, s3, 4")
    srd(e, 20, 4, 5, X_BYTES)
    srd(e, 24, 14, 15, 1152)
    e(f"""
    v_and_b32 v1, 31, v0
    v_lshrrev_b32 v2, 5, v0
    s_lshl_b32 s30, s2, 3
    s_lshl_b32 s31, s3, 1
    s_add_u32 s30, s30, s31
    v_add_u32 v3, s30, v2
    v_mul_u32_u24 v4, 1152, v3
    v_lshlrev_b32 v5, 4, v1
    v_add_u32 v4, v4, v5
    v_mov_b32 v6, 0x7ffffff0
    v_cmp_gt_u32 vcc, 8, v1
    buffer_load_dwordx4 v[40:43], v4, s[20:23], 0 offen
    buffer_load_dwordx4 v[44:47], v4, s[20:23], 0 offen offset:512
    v_cndmask_b32 v6, v6, v4, vcc
    buffer_load_dwordx4 v[52:55], v5, s[24:27], 0 offen
    buffer_load_dwordx4 v[48:51], v6, s[20:23], 0 offen offset:1024
    buffer_load_dwordx4 v[56:59], v5, s[24:27], 0 offen offset:512
    buffer_load_dwordx4 v[60:63], v5, s[24:27], 0 offen offset:1024
    """)
    e(f"""
    s_lshl_b32 s30, s28, 7
    s_lshl_b32 s31, s3, 5
    s_add_u32 s30, s30, s31
    v_lshrrev_b32 v4, 3, v0
    v_add_u32 v4, s30, v4
    v_mul_u32_u24 v4, 1152, v4
    v_and_b32 v5, 7, v0
    v_lshrrev_b32 v6, 4, v0
    v_xor_b32 v5, v5, v6
    v_lshl_add_u32 v8, v5, 4, v4
    v_xor_b32 v5, 4, v5
    v_lshl_add_u32 v9, v5, 4, v4
    v_add_u32 v9, {8*1152}, v9
    v_add_u32 v10, {16*1152}, v8
    v_add_u32 v11, {16*1152}, v9
    """)
    e(f"""
    s_mul_i32 s30, s29, 288
    s_add_u32 s44, s6, s30
    s_addc_u32 s45, s7, 0
    s_mov_b32 s46, 3456
    s_cmp_lt_u32 s29, 12
    s_cbranch_scc1 K1_LW1
    s_sub_u32 s30, s30, {12*288}
    s_add_u32 s44, s8, s30
    s_addc_u32 s45, s9, 0
    s_mov_b32 s46, 1152
    K1_LW1:
    s_lshr_b32 s30, s29, 2
    s_cmp_eq_u32 s30, 2
    s_cselect_b32 s48, s12, s10
    s_cselect_b32 s49, s13, s11
    s_and_b32 s30, s29, 3
    s_cmp_eq_u32 s30, 1
    s_cselect_b32 s30, 4, 0
    s_add_u32 s48, s48, s30
    s_addc_u32 s49, s49, 0
    s_lshl_b32 s47, s46, 6
    s_lshl_b32 s31, s3, 4
    v_mov_b32 v34, s44
    v_mov_b32 v35, s45
    v_mov_b32 v36, s48
    v_mov_b32 v37, s49
    v_mov_b32 v38, s47
    v_mov_b32 v39, {64*36}
    """)
    WAD = 12
    for j in range(5):
        e(f"""
        v_add_u32 v4, {64*j}, v0
        v_mul_u32_u24 v5, 3277, v4
        v_lshrrev_b32 v5, 16, v5
        v_mul_u32_u24 v6, 20, v5
        v_sub_u32 v6, v4, v6
        v_add_u32 v5, s31, v5
        v_mul_lo_u32 v28, v5, s46
        v_subrev_u32 v29, 2, v6
        v_cmp_lt_u32 vcc, 17, v6
        v_mul_u32_u24 v30, 36, v5
        v_subrev_u32 v31, 16, v6
        v_cndmask_b32 v29, v6, v29, vcc
        v_lshl_add_u32 v28, v29, 4, v28
        v_lshl_add_u32 v30, v31, 4, v30
        v_cmp_gt_u32 vcc, 2, v31
        s_nop 1
        v_cndmask_b32 v28, v28, v30, vcc
        v_cndmask_b32 v29, v34, v36, vcc
        v_cndmask_b32 v30, v35, v37, vcc
        v_cndmask_b32 v{22+j}, v38, v39, vcc
        v_add_co_u32 v{WAD+2*j}, vcc, v29, v28
        s_nop 1
        v_addc_co_u32 v{WAD+2*j+1}, vcc, 0, v30, vcc
        """)
    e(f"""
    s_lshl_b32 s50, s3, 12
    s_mul_i32 s51, s3, 5120
    s_add_u32 s51, s51, 16384
    s_mov_b32 s52, 0
    s_mov_b32 s53, 0
    s_mov_b32 s55, 0
    K1_ISSUE:
    s_add_u32 s56, s55, s50
    s_add_u32 s57, s55, s51
    """)
    for j in range(4):
        e(f"s_add_u32 m0, s56, {1024*j}")
        e("s_nop 0")
        e(f"buffer_load_dwordx4 v{8+j}, s[20:23], s52 offen lds")
    for j in range(5):
        e(f"s_add_u32 m0, s57, {1024*j}")
        e("s_nop 0")
        e(f"global_load_lds_dwordx4 {vr(WAD+2*j,2)}, off")
        e(f"v_add_co_u32 v{WAD+2*j}, vcc, v{22+j}, v{WAD+2*j}")
        e("s_nop 1")
        e(f"v_addc_co_u32 v{WAD+2*j+1}, vcc, 0, v{WAD+2*j+1}, vcc")
    e(f"""
    s_add_u32 s52, s52, 128
    s_add_u32 s53, s53, 1
    s_add_u32 s55, s55, {STAGE}
    s_cmp_eq_u32 s55, {4*STAGE}
    s_cselect_b32 s55, 0, s55
    s_cmp_lt_u32 s53, 4
    s_cbranch_scc1 K1_ISSUE
    s_cmp_lg_u32 s53, 4
    s_cbranch_scc1 K1_LSYNC
    s_waitcnt vmcnt(27)
    s_barrier
    K1_LSYNC:
    s_waitcnt vmcnt(18)
    s_barrier
    s_cmp_lt_u32 s53, 9
    s_cbranch_scc1 K1_ISSUE
    """)
    e("v_mov_b32 v4, 0")
    for i in range(12):
        e(f"v_dot2_f32_bf16 v4, v{40+i}, v{52+i}, v4")
    e("""
    s_waitcnt vmcnt(9)
    s_barrier
    s_nop 1
    v_add_f32_dpp v4, v4, v4 quad_perm:[1,0,3,2] row_mask:0xf bank_mask:0xf
    s_nop 1
    v_add_f32_dpp v4, v4, v4 quad_perm:[2,3,0,1] row_mask:0xf bank_mask:0xf
    s_nop 1
    v_add_f32_dpp v4, v4, v4 row_half_mirror row_mask:0xf bank_mask:0xf
    s_nop 1
    v_add_f32_dpp v4, v4, v4 row_mirror row_mask:0xf bank_mask:0xf
    v_mov_b32 v5, v4
    s_nop 1
    v_permlane16_swap_b32 v4, v5
    s_nop 1
    v_add_f32 v4, v4, v5
    v_mul_f32 v4, 0xbfb8aa3b, v4
    v_exp_f32 v4, v4
    s_nop 0
    v_add_f32 v4, 1.0, v4
    v_rcp_f32 v4, v4
    v_lshlrev_b32 v3, 2, v3
    v_mov_b32 v6, 0x7ffffff0
    v_cmp_eq_u32 vcc, 0, v1
    s_mov_b32 s30, %d
    s_waitcnt vmcnt(0)
    s_barrier
    v_cndmask_b32 v3, v6, v3, vcc
    buffer_store_dword v4, v3, s[40:43], s30 offen
    K1_END:
    s_endpgm
    """ % G_OFF)

def gen_k2(e):
    khead(e, "attn_kernel")
    AKM, AKL, AVT, IDX = 4, 5, 6, 7
    QM0, QM1, QL, KL, KM, V0, V1 = 8, 12, 16, 18, 20, 24, 28
    SA, SB, O0, O1 = 32, 64, 96, 112
    G0, G1 = 2, 3
    e("""
    s_cmp_ge_u32 s2, 256
    s_cbranch_scc1 K2_END
    s_load_dwordx2 s[4:5], s[0:1], 88
    s_load_dwordx2 s[6:7], s[0:1], 16
    s_load_dwordx2 s[8:9], s[0:1], 56
    v_lshrrev_b32 v1, 6, v0
    v_and_b32 v0, 63, v0
    s_and_b32 s10, s2, 7
    v_readfirstlane_b32 s3, v1
    s_lshr_b32 s11, s2, 5
    s_lshl_b32 s11, s11, 3
    s_add_u32 s10, s10, s11
    s_bfe_u32 s11, s2, 0x20003
    """)
    e(f"""
    s_and_b32 s12, s10, 1
    s_add_u32 s12, s12, 32
    s_cmp_lt_u32 s10, 32
    s_cselect_b32 s12, s10, s12
    s_mul_i32 s12, s12, {IMG}
    s_lshl_b32 s13, s3, 10
    s_add_u32 s12, s12, s13
    s_lshl_b32 s14, s11, 4
    s_lshl_b32 s15, s3, 1
    s_add_u32 s14, s14, s15
    v_lshlrev_b32 v{AKM}, 4, v0
    s_waitcnt lgkmcnt(0)
    """)
    srd(e, 20, 4, 5, WS_SIZE)
    def dma(i):
        e(f"s_add_u32 m0, s13, {8192*i}")
        e(f"s_add_u32 s16, s12, {8192*i}")
        e(f"buffer_load_dwordx4 v{AKM}, s[20:23], s16 offen lds")
    e(f"""
    s_lshl_b32 s16, s10, 16
    s_lshl_b32 s17, s14, 10
    s_add_u32 s16, s16, s17
    s_add_u32 s16, s16, {QM_OFF}
    buffer_load_dwordx4 {vr(QM0,4)}, v{AKM}, s[20:23], s16 offen
    buffer_load_dwordx4 {vr(QM1,4)}, v{AKM}, s[20:23], s16 offen offset:1024
    s_lshl_b32 s16, s10, 13
    s_lshl_b32 s17, s14, 7
    s_add_u32 s16, s16, s17
    s_add_u32 s16, s16, {QL_OFF}
    v_lshlrev_b32 v1, 2, v0
    buffer_load_dword v{QL}, v1, s[20:23], s16 offen
    """)
    for i in range(3): dma(i)
    e(f"""
    s_add_u32 s16, s17, {G_OFF}
    v_and_b32 v{AKL}, 31, v0
    v_lshlrev_b32 v{AKL}, 2, v{AKL}
    buffer_load_dword v{G0}, v{AKL}, s[20:23], s16 offen
    buffer_load_dword v{G1}, v{AKL}, s[20:23], s16 offen offset:128
    """)
    for i in range(3, 18): dma(i)
    WJ = 128
    e(f"""
    s_lshl_b32 s30, s2, 3
    s_add_u32 s30, s30, s3
    s_mul_i32 s31, s30, 1821
    s_lshr_b32 s31, s31, 16
    s_mul_i32 s32, s31, 36
    s_sub_u32 s32, s30, s32
    """)
    e(f"""
    s_cmp_lt_u32 s31, 32
    s_cselect_b32 s33, 1, 0
    s_and_b32 s34, s31, 15
    s_mul_i32 s34, s34, {36*1152}
    s_and_b32 s35, s31, 1
    s_mul_i32 s35, s35, {288*1152}
    s_add_u32 s35, s35, {16*1152}
    s_lshr_b32 s37, s31, 4
    s_bfe_u32 s36, s31, 0x10001
    s_cmp_lt_u32 s31, 32
    s_cselect_b32 s34, s34, s35
    s_cselect_b32 s35, s37, s36
    s_cmp_eq_u32 s35, 0
    s_cselect_b32 s24, s6, s8
    s_cselect_b32 s25, s7, s9
    s_mov_b32 s26, {576*1152}
    s_mov_b32 s27, 0x00020000
    s_lshl_b32 s32, s32, 5
    s_add_u32 s34, s34, s32
    v_bfe_u32 v1, v0, 3, 2
    v_lshrrev_b32 v{WJ+4}, 1, v1
    v_mul_u32_u24 v{WJ+4}, 18, v{WJ+4}
    v_and_b32 v{WJ+5}, 1, v1
    v_lshl_add_u32 v{WJ+4}, v{WJ+5}, 2, v{WJ+4}
    v_mul_u32_u24 v{WJ+5}, 72, v1
    s_cmp_lt_u32 s31, 32
    s_cselect_b64 vcc, -1, 0
    v_cndmask_b32 v{WJ+4}, v{WJ+5}, v{WJ+4}, vcc
    v_mul_u32_u24 v{WJ+4}, 1152, v{WJ+4}
    v_lshrrev_b32 v1, 5, v0
    v_lshl_add_u32 v{WJ+4}, v1, 4, v{WJ+4}
    v_and_b32 v1, 7, v0
    v_lshl_add_u32 v{WJ+4}, v1, 1, v{WJ+4}
    s_cmp_lt_u32 s30, 1296
    s_cselect_b32 s34, s34, 0
    """)
    for j in range(8):
        jm = (8*(j>>2) + (j&3)) * 1152
        jl = (18*(j>>1) + (j&1)) * 1152
        e("s_cmp_eq_u32 s33, 1")
        e(f"s_mov_b32 s35, {jl}")
        e(f"s_cselect_b32 s35, {jm}, s35")
        e("s_add_u32 s35, s35, s34")
        e(f"buffer_load_ushort v{(WJ+8 if j & 1 else WJ)+(j>>1)}, v{WJ+4}, s[24:27], s35 offen")
    e(f"""
    v_add_u32 v{AKL}, 8192, v{AKL}
    v_and_b32 v1, 31, v0
    v_lshrrev_b32 v{AVT}, 5, v0
    v_mul_u32_u24 v{AVT}, 288, v{AVT}
    v_lshl_add_u32 v{AVT}, v1, 4, v{AVT}
    v_add_u32 v{AVT}, 9216, v{AVT}
    v_mov_b32 v{IDX}, 0xdddddddd
    v_mov_b32 v{QL+1}, 0
    v_mov_b32 v{KL+1}, 0x3f803f80
    s_mov_b32 s28, 0x0003ffff
    s_mov_b32 s29, 0x0003ffff
    """)
    for i in range(8): e(f"v_mov_b32 v{V0+i}, 0x3f803f80")
    for i in range(32): e(f"v_mov_b32 v{O0+i}, 0")
    for i in range(8): e(f"v_mov_b32 v{SB+24+i}, 0")
    def toff(t):
        c, i = divmod(t, 8)
        return c*CHUNK, i
    def rdKM(t):
        c, i = toff(t); return f"ds_read_b128 {vr(KM,4)}, v{AKM} offset:{c + 1024*i}"
    def rdKL(t):
        c, i = toff(t); return f"ds_read_b32 v{KL}, v{AKL} offset:{c + 128*i}"
    def rdV(t, h):
        c, i = toff(t)
        return ("s_mov_b64 exec, s[28:29]\n"
                f"ds_read_b128 {vr(V1 if h else V0,4)}, v{AVT} offset:{c + 1152*i + 576*h}\n"
                "s_mov_b64 exec, -1")
    def m2b(S): return f"v_mfma_f32_32x32x4_2b_bf16 {vr(S,32)}, {vr(KL,2)}, {vr(QL,2)}, 0"
    def qk(S, n): return f"v_mfma_f32_32x32x16_bf16 {vr(S+16*n,16)}, {vr(KM,4)}, {vr(QM1 if n else QM0,4)}, {vr(S+16*n,16)}"
    def pv(S, n, h): return f"v_smfmac_f32_32x32x32_bf16 {vr(O1 if n else O0,16)}, {vr(V1 if h else V0,4)}, {vr(S+16*n+8*h,8)}, v{IDX}"
    def ex(S, a, b): return "\n".join(f"v_exp_f32 v{S+i}, v{S+i}" for i in range(a, b+1))
    def maxtree(dst, S, first):
        L = []
        if first:
            L.append(f"v_max3_f32 v{dst}, v{S}, v{S+1}, v{S+2}")
            rest = list(range(3, 16))
        else:
            rest = list(range(0, 16))
        while rest:
            a = rest.pop(0)
            b = rest.pop(0) if rest else a
            L.append(f"v_max3_f32 v{dst}, v{dst}, v{S+a}, v{S+b}")
        return "\n".join(L)
    e("s_waitcnt vmcnt(25)")
    e("s_barrier")
    e(rdKL(0)); e(rdKM(0))
    e("s_waitcnt lgkmcnt(0)")
    e(m2b(SA))
    e("s_nop 15\ns_nop 3")
    e(qk(SA, 0)); e(qk(SA, 1))
    e("s_nop 15")
    e(maxtree(WJ+6, SA, True)); e(maxtree(WJ+7, SA+16, True))
    e(f"""
    s_nop 1
    v_permlane32_swap_b32 v{WJ+6}, v{WJ+7}
    s_nop 1
    v_max_f32 v{WJ+6}, v{WJ+6}, v{WJ+7}
    v_cvt_pk_bf16_f32 v{QL+1}, -v{WJ+6}, 0
    s_nop 1
    """)
    e(m2b(SA))
    e(rdKL(1))
    e("s_nop 15\ns_nop 2")
    e(qk(SA, 0)); e(qk(SA, 1))
    e(rdKM(1)); e(rdV(0, 0))
    e("s_mov_b32 s18, 0")
    e("s_nop 9")
    e(".p2align 6")
    e("K2_LOOP:")
    for t in range(8):
        cur, nxt = (SA, SB) if t % 2 == 0 else (SB, SA)
        if t == 6:
            e("""
            s_cmp_eq_u32 s18, 0
            s_cbranch_scc1 K2_SYNC0
            s_cmp_eq_u32 s18, 3
            s_cbranch_scc1 K2_SYNC1
            K2_SYNC_RET:
            """)
        e(ex(cur, 0, 1))
        e(pv(nxt, 1, 1))
        e(rdV(t, 1))
        e(ex(cur, 2, 4))
        e("s_waitcnt lgkmcnt(3)")
        e(m2b(nxt))
        e(rdKL(t+2))
        e(ex(cur, 5, 12))
        e("s_waitcnt lgkmcnt(2)")
        e(pv(cur, 0, 0))
        e(ex(cur, 13, 17))
        e("s_waitcnt lgkmcnt(1)")
        e(pv(cur, 0, 1))
        e(ex(cur, 18, 20))
        e(qk(nxt, 0))
        e(ex(cur, 21, 23))
        e(qk(nxt, 1))
        e(rdKM(t+2))
        e(ex(cur, 24, 26))
        e(pv(cur, 1, 0))
        e(rdV(t+1, 0))
        if t == 7:
            e(f"""
            v_add_u32 v{AKM}, {CHUNK}, v{AKM}
            v_add_u32 v{AKL}, {CHUNK}, v{AKL}
            v_add_u32 v{AVT}, {CHUNK}, v{AVT}
            s_add_u32 s18, s18, 1
            s_cmp_lt_u32 s18, 8
            """)
        e(ex(cur, 27, 31))
    e("s_cbranch_scc1 K2_LOOP")
    e("s_nop 1")
    e(pv(SB, 1, 1))
    e("s_mov_b32 s19, 0")
    e("s_waitcnt lgkmcnt(0)")
    e("s_nop 10")
    e("K2_FIN:")
    e("s_cmp_lg_u32 s19, 0")
    e("s_cbranch_scc1 K2_OUT")
    T = SA
    e(f"v_max_f32 v{T}, v{O0+10}, v{O1+10}")
    e(f"v_mov_b32 v{T+1}, 0")
    for i in range(11):
        e(f"v_fmac_f32 v{T}, v{O0+i}, v{T+1}")
        e(f"v_fmac_f32 v{T}, v{O1+i}, v{T+1}")
    e(f"""
    v_mov_b32 v{T+1}, 0x4e800000
    v_cmp_nlt_f32 vcc, v{T}, v{T+1}
    s_nop 4
    s_cmp_lg_u64 vcc, 0
    s_cbranch_scc1 K2_SLOW
    K2_OUT:
    s_cmp_lt_u32 s10, 32
    s_cbranch_scc1 K2_GA
    v_sub_f32 v{G0}, 1.0, v{G0}
    v_sub_f32 v{G1}, 1.0, v{G1}
    K2_GA:
    v_rcp_f32 v{T}, v{O0+10}
    v_rcp_f32 v{T+1}, v{O1+10}
    s_nop 0
    v_mul_f32 v{T}, v{T}, v{G0}
    v_mul_f32 v{T+1}, v{T+1}, v{G1}
    """)
    for n, O in enumerate((O0, O1)):
        for i in range(10):
            e(f"v_mul_f32 v{O+i}, v{O+i}, v{T+n}")
        for i in range(5):
            e(f"v_cvt_pk_bf16_f32 v{T+4+8*n+i}, v{O+2*i}, v{O+2*i+1}")
    e(f"""
    v_bfe_u32 v{T+2}, v0, 4, 1
    v_mul_u32_u24 v{T+2}, {36*1024}, v{T+2}
    v_and_b32 v{T+3}, 15, v0
    v_lshl_add_u32 v{T+2}, v{T+3}, 4, v{T+2}
    v_lshrrev_b32 v{T+3}, 5, v0
    v_lshl_add_u32 v{T+20}, v{T+3}, 8, v{T+2}
    v_mov_b32 v{T+21}, 0x7ffffff0
    v_cmp_eq_u32 vcc, 0, v{T+3}
    s_mul_i32 s16, s14, {72*1024}
    s_add_u32 s16, s16, {O_OFF}
    v_cndmask_b32 v{T+21}, v{T+21}, v{T+2}, vcc
    s_lshl_b32 s17, s10, 9
    s_add_u32 s17, s17, s16
    s_lshr_b32 s30, s10, 2
    s_lshl_b32 s30, s30, 8
    s_and_b32 s31, s10, 3
    s_lshl_b32 s31, s31, 2
    s_add_u32 s30, s30, s31
    s_add_u32 s30, s30, s16
    s_add_u32 s30, s30, {32*1024}
    buffer_store_dwordx4 {vr(T+4,4)}, v{T+20}, s[20:23], s17 offen
    buffer_store_dword v{T+8}, v{T+21}, s[20:23], s30 offen
    s_add_u32 s17, s17, {72*1024}
    s_add_u32 s30, s30, {72*1024}
    buffer_store_dwordx4 {vr(T+12,4)}, v{T+20}, s[20:23], s17 offen
    buffer_store_dword v{T+16}, v{T+21}, s[20:23], s30 offen
    K2_END:
    s_endpgm
    """)
    e(f"""
    K2_SYNC0:
    s_waitcnt vmcnt(17)
    s_barrier
    s_branch K2_SYNC_RET
    K2_SYNC1:
    s_waitcnt vmcnt(0)
    s_barrier
    s_lshl_b32 s30, s30, 10
    s_add_u32 s30, s30, {WF_OFF}
    s_cmp_lt_u32 s30, {WF_OFF + 1296*1024}
    s_cbranch_scc0 K2_SYNC_RET
    v_lshlrev_b32 v{WJ+4}, 4, v0
    v_lshl_or_b32 v{WJ}, v{WJ+8}, 16, v{WJ}
    v_lshl_or_b32 v{WJ+1}, v{WJ+9}, 16, v{WJ+1}
    v_lshl_or_b32 v{WJ+2}, v{WJ+10}, 16, v{WJ+2}
    v_lshl_or_b32 v{WJ+3}, v{WJ+11}, 16, v{WJ+3}
    buffer_store_dwordx4 {vr(WJ,4)}, v{WJ+4}, s[20:23], s30 offen
    s_branch K2_SYNC_RET
    """)
    M0, M1 = WJ+6, WJ+7
    def rewind():
        e(f"""
        v_subrev_u32 v{AKM}, {8*CHUNK}, v{AKM}
        v_subrev_u32 v{AKL}, {8*CHUNK}, v{AKL}
        v_subrev_u32 v{AVT}, {8*CHUNK}, v{AVT}
        s_mov_b32 s18, 0
        """)
    def advance():
        e(f"""
        s_add_u32 s18, s18, 1
        s_and_b32 s16, s18, 7
        s_cmp_eq_u32 s16, 0
        s_mov_b32 s17, 1024
        s_cselect_b32 s16, {CHUNK-7*1024}, s17
        v_add_u32 v{AKM}, s16, v{AKM}
        s_mov_b32 s17, 128
        s_cselect_b32 s16, {CHUNK-7*128}, s17
        v_add_u32 v{AKL}, s16, v{AKL}
        s_mov_b32 s17, 1152
        s_cselect_b32 s16, {CHUNK-7*1152}, s17
        v_add_u32 v{AVT}, s16, v{AVT}
        s_cmp_lt_u32 s18, 64
        """)
    def scores():
        e(rdKL(0)); e(rdKM(0))
        e("s_waitcnt lgkmcnt(0)")
        e(m2b(SA))
        e("s_nop 15\ns_nop 3")
        e(qk(SA, 0)); e(qk(SA, 1))
        e("s_nop 15")
    e("K2_SLOW:")
    e(f"v_mov_b32 v{QL+1}, 0")
    e(f"v_mov_b32 v{M0}, 0xff800000")
    e(f"v_mov_b32 v{M1}, 0xff800000")
    rewind()
    e("K2_SLOW_A:")
    scores()
    e(maxtree(M0, SA, False)); e(maxtree(M1, SA+16, False))
    advance()
    e("s_cbranch_scc1 K2_SLOW_A")
    for M in (M0, M1):
        e(f"""
        v_mov_b32 v{WJ+5}, v{M}
        s_nop 1
        v_permlane32_swap_b32 v{M}, v{WJ+5}
        s_nop 1
        v_max_f32 v{M}, v{M}, v{WJ+5}
        """)
    for i in range(32): e(f"v_mov_b32 v{O0+i}, 0")
    rewind()
    e("K2_SLOW_B:")
    e(rdV(0, 0)); e(rdV(0, 1))
    scores()
    for i in range(32):
        e(f"v_sub_f32 v{SA+i}, v{SA+i}, v{M0 if i < 16 else M1}")
    e(ex(SA, 0, 31))
    e("s_nop 1")
    for n in range(2):
        for h in range(2):
            e(pv(SA, n, h))
    advance()
    e("s_cbranch_scc1 K2_SLOW_B")
    e("s_mov_b32 s19, 1")
    e("s_nop 15")
    e("s_branch K2_FIN")

def gen_k3(e):
    khead(e, "oproj_kernel")
    e("""
    s_cmp_ge_u32 s2, 256
    s_cbranch_scc1 K3_END
    s_load_dwordx2 s[4:5], s[0:1], 88
    s_load_dwordx2 s[6:7], s[0:1], 72
    v_lshrrev_b32 v1, 6, v0
    v_and_b32 v0, 63, v0
    s_and_b32 s10, s2, 3
    v_readfirstlane_b32 s3, v1
    s_lshl_b32 s10, s10, 3
    s_bfe_u32 s11, s2, 0x30003
    s_add_u32 s10, s10, s11
    s_bfe_u32 s11, s2, 0x10002
    s_lshl_b32 s11, s11, 2
    s_lshr_b32 s12, s2, 6
    s_add_u32 s11, s11, s12
    """)
    e(f"""
    s_mul_i32 s12, s10, {4*36*1024}
    s_mul_i32 s13, s3, {9*1024}
    s_add_u32 s12, s12, s13
    s_add_u32 s12, s12, {O_OFF}
    s_mul_i32 s13, s3, {9*72*512}
    s_mul_i32 s14, s11, {9*512}
    s_add_u32 s13, s13, s14
    s_add_u32 s13, s13, {WF_OFF}
    v_lshlrev_b32 v1, 4, v0
    v_lshrrev_b32 v3, 4, v0
    v_lshlrev_b32 v3, 7, v3
    v_and_b32 v2, 7, v0
    v_lshl_add_u32 v3, v2, 4, v3
    v_bfe_u32 v2, v0, 3, 1
    v_lshl_add_u32 v2, v2, 9, v3
    s_waitcnt lgkmcnt(0)
    """)
    srd(e, 20, 4, 5, WS_SIZE)
    srd(e, 24, 6, 7, X_BYTES)
    def base(ks): return 4 + 36 * (ks % 7)
    def loads(ks):
        b = base(ks)
        for a in range(4):
            e(f"s_add_u32 s16, s12, {a*36*1024 + ks*1024}")
            e(f"buffer_load_dwordx4 {vr(b+4*a,4)}, v1, s[20:23], s16 offen")
        e(f"s_add_u32 s16, s13, {ks*72*512}")
        for t in range(4):
            e(f"buffer_load_dwordx4 {vr(b+16+4*t,4)}, v2, s[20:23], s16 offen offset:{1024*t}")
        e(f"s_add_u32 s16, s13, {ks*72*512 + 4096}")
        e(f"buffer_load_dwordx4 {vr(b+32,4)}, v3, s[20:23], s16 offen")
    for ks in range(7): loads(ks)
    for ks in range(9):
        b = base(ks)
        issued = min(9, 7 + ks)
        e(f"s_waitcnt vmcnt({9*(issued - ks - 1)})")
        for t in range(5):
            for a in range(4):
                d = ar(4*(5*a+t), 4)
                c = "0" if ks == 0 else d
                e(f"v_mfma_f32_16x16x32_bf16 {d}, {vr(b+16+4*t,4)}, {vr(b+4*a,4)}, {c}")
        if ks + 7 < 9: loads(ks + 7)
    e(f"""
    s_mul_i32 s16, s3, 5120
    v_add_u32 v4, s16, v1
    s_mul_i32 s16, s3, 20480
    v_add_u32 v5, s16, v1
    s_nop 7
    """)
    for a in range(4):
        for t in range(5):
            off = a*20480 + t*1024
            if off < 65536:
                e(f"ds_write_b128 v4, {ar(4*(5*a+t),4)} offset:{off}")
            else:
                e(f"v_add_u32 v6, 65536, v4")
                e(f"ds_write_b128 v6, {ar(4*(5*a+t),4)} offset:{off-65536}")
        if a == 1: e("s_waitcnt lgkmcnt(4)")
    e("s_waitcnt lgkmcnt(0)")
    e("s_barrier")
    for t in range(5):
        for w in range(4):
            e(f"ds_read_b128 {vr(8+16*t+4*w,4)}, v5 offset:{w*5120+t*1024}")
        if t == 2: e("s_waitcnt lgkmcnt(4)")
    e(f"""
    s_lshl_b32 s16, s10, 6
    s_lshl_b32 s17, s3, 4
    s_add_u32 s16, s16, s17
    s_mul_i32 s16, s16, 1152
    s_mul_i32 s17, s11, 144
    s_add_u32 s16, s16, s17
    v_and_b32 v2, 15, v0
    v_mul_u32_u24 v2, 1152, v2
    v_lshrrev_b32 v3, 4, v0
    v_lshl_add_u32 v2, v3, 3, v2
    v_mov_b32 v6, 0x7ffffff0
    v_cmp_gt_u32 vcc, 2, v3
    s_waitcnt lgkmcnt(0)
    v_cndmask_b32 v6, v6, v2, vcc
    """)
    for t in range(5):
        b = 8 + 16*t
        for r in range(4):
            e(f"v_add_f32 v{b+r}, v{b+r}, v{b+4+r}")
            e(f"v_add_f32 v{b+8+r}, v{b+8+r}, v{b+12+r}")
        for r in range(4):
            e(f"v_add_f32 v{b+r}, v{b+r}, v{b+8+r}")
        e(f"v_cvt_pk_bf16_f32 v{b+4}, v{b}, v{b+1}")
        e(f"v_cvt_pk_bf16_f32 v{b+5}, v{b+2}, v{b+3}")
        e(f"buffer_store_dwordx2 {vr(b+4,2)}, v{6 if t == 4 else 2}, s[24:27], s16 offen offset:{32*t}")
    e("K3_END:")
    e("s_endpgm")

def main(out):
    ref = open(f"cdna_kernels/{NAME}.s.ref").read().split("\n")
    hdr = [l for l in ref if l.startswith(";") and "@launch" not in l and "Override launch" not in l and "grid=ceil" not in l]
    e = Em()
    gen_k1(e); gen_k2(e); gen_k3(e)
    txt = "\n".join(hdr) + "\n"
    txt += "; @launch kernel=proj_kernel grid=(256,1,1) block=(512,1,1) lds=147456\n"
    txt += "; @launch kernel=attn_kernel grid=(256,1,1) block=(512,1,1) lds=163840\n"
    txt += "; @launch kernel=oproj_kernel grid=(256,1,1) block=(256,1,1) lds=81920\n"
    txt += '.amdgcn_target "amdgcn-amd-amdhsa--gfx950"\n.text\n'
    txt += e.text()
    txt += '.section .rodata,"a"\n'
    txt += kdesc("proj_kernel", 152, 152)
    txt += kdesc("attn_kernel", 140, 140)
    txt += kdesc("oproj_kernel", 256+80, 256)
    open(out, "w").write(txt)

if __name__ == "__main__":
    main(sys.argv[1] if len(sys.argv) > 1 else f"cdna_kernels/{NAME}.s")
```

```python
import math, struct, sys

NAME = "gated_mix__softmax_full_mha__grouped_kv_mqa__prompt"

IMG   = 147456
CHUNK = 18432
KV_OFF = 0
QM_OFF = 0x500000
QL_OFF = 0x900000
G_OFF  = 0x980000
WF_OFF = 0xA00000
O_OFF  = 0xC00000
WS_SIZE = 0x1100000
X_BYTES = 2048*576*2

def f32bits(x): return struct.unpack("<I", struct.pack("<f", x))[0]
QSCALE = f32bits((18 ** -0.5) * math.log2(math.e))

class Em:
    def __init__(self): self.L = []
    def __call__(self, s=""):
        for line in s.split("\n"):
            line = line.strip()
            if not line: continue
            if line.endswith(":") or line.startswith("."):
                self.L.append(line)
            else:
                self.L.append("    " + line)
    def text(self): return "\n".join(self.L) + "\n"

def vr(a, n=1): return f"v{a}" if n == 1 else f"v[{a}:{a+n-1}]"
def ar(a, n=1): return f"a{a}" if n == 1 else f"a[{a}:{a+n-1}]"
def sr(a, n=1): return f"s{a}" if n == 1 else f"s[{a}:{a+n-1}]"

def srd(e, d, lo, hi, nbytes):
    e(f"s_mov_b32 s{d}, s{lo}")
    e(f"s_mov_b32 s{d+1}, s{hi}")
    e(f"s_mov_b32 s{d+2}, {nbytes}")
    e(f"s_mov_b32 s{d+3}, 0x00020000")

import os
PROF = os.environ.get("PROF", "0") == "1"
TS_OFF = 0x10C0000
def stamp(e, i):
    if not PROF: return
    e(f"s_memtime s[{60+2*i}:{61+2*i}]")
    e("s_waitcnt lgkmcnt(0)")
def stamp_rt(e, i):
    if not PROF: return
    e(f"s_memrealtime s[{60+2*i}:{61+2*i}]")
    e("s_waitcnt lgkmcnt(0)")
def stamp_out(e, kidx, wavereg, srdbase, n=8):
    if not PROF: return
    e(f"s_lshl_b32 s58, s2, 3")
    e(f"s_add_u32 s58, s58, {wavereg}")
    e(f"s_lshl_b32 s58, s58, 5")
    e(f"s_add_u32 s58, s58, {TS_OFF + kidx*65536}")
    e("s_mov_b64 exec, 1")
    e("v_mov_b32 v1, 0")
    for i in range(n):
        e(f"v_mov_b32 v2, s{60+2*i}")
        e(f"buffer_store_dword v2, v1, s[{srdbase}:{srdbase+3}], s58 offen offset:{4*i}")
        e("s_nop 1")

def khead(e, name):
    e(f".globl {name}")
    e(".p2align 8")
    e(f".type {name},@function")
    e(f"{name}:")

def kdesc(name, nvgpr, accum, nsgpr=96):
    return f""".p2align 6
.amdhsa_kernel {name}
  .amdhsa_next_free_vgpr {nvgpr}
  .amdhsa_next_free_sgpr {nsgpr}
  .amdhsa_accum_offset {accum}
  .amdhsa_group_segment_fixed_size 0
  .amdhsa_kernarg_size 96
  .amdhsa_user_sgpr_count 2
  .amdhsa_user_sgpr_kernarg_segment_ptr 1
  .amdhsa_system_sgpr_workgroup_id_x 1
.end_amdhsa_kernel
"""

STAGE = 36864
def gen_k1(e):
    khead(e, "proj_kernel")
    e("""
    s_cmp_ge_u32 s2, 256
    s_cbranch_scc1 K1_EXIT
    s_load_dwordx4 s[4:7], s[0:1], 0
    s_load_dwordx4 s[8:11], s[0:1], 32
    s_load_dwordx2 s[12:13], s[0:1], 48
    s_load_dwordx2 s[14:15], s[0:1], 64
    s_load_dwordx2 s[16:17], s[0:1], 88
    v_lshrrev_b32 v1, 6, v0
    v_and_b32 v0, 63, v0
    s_and_b32 s18, s2, 7
    v_readfirstlane_b32 s3, v1
    s_lshr_b32 s19, s2, 3
    s_and_b32 s28, s18, 1
    s_lshl_b32 s28, s28, 3
    s_and_b32 s29, s19, 7
    s_add_u32 s28, s28, s29
    s_lshr_b32 s29, s18, 1
    s_lshl_b32 s29, s29, 2
    s_lshr_b32 s30, s19, 3
    s_add_u32 s29, s29, s30
    """)
    stamp(e, 0); stamp_rt(e, 6)
    if PROF: e("s_mov_b32 s59, s3")
    e("s_waitcnt lgkmcnt(0)")
    srd(e, 40, 16, 17, WS_SIZE)
    e("""
    s_cmp_ge_u32 s3, 4
    s_cbranch_scc1 K1_LOADER
    """)
    e("""
    v_and_b32 v1, 31, v0
    v_lshrrev_b32 v2, 5, v0
    v_bfe_u32 v3, v0, 4, 1
    v_bfe_u32 v4, v0, 2, 2
    v_and_b32 v5, 3, v0
    s_lshr_b32 s30, s29, 2
    """)
    e("""
    v_lshl_add_u32 v6, v2, 3, v4
    v_mul_u32_u24 v6, 320, v6
    v_add_u32 v6, 16384, v6
    v_lshlrev_b32 v7, 3, v5
    s_cmp_eq_u32 s30, 2
    s_cbranch_scc1 K1_VTYPE
    """)
    XB, WB0, WB3, WB4 = 8, 9, 10, 11
    XA = 12
    WA0, WA3, WA4 = 16, 17, 18
    F = [24, 48]
    ACC = 72
    for vtype in (0, 1):
        tag = "V" if vtype else "Q"
        if vtype: e("K1_VTYPE:")
        if vtype:
            e("""
            v_and_b32 v19, 0x13, v1
            v_bfe_u32 v20, v1, 2, 1
            v_lshl_or_b32 v19, v20, 3, v19
            v_bfe_u32 v20, v1, 3, 1
            v_lshl_or_b32 v19, v20, 2, v19
            """)
        else:
            e("v_mov_b32 v19, v1")
        e(f"""
        v_bfe_u32 v20, v19, 1, 3
        v_xor_b32 v20, v20, v2
        v_lshlrev_b32 v20, 4, v20
        v_lshl_add_u32 v{XB}, v19, 7, v20
        s_lshl_b32 s31, s3, 12
        v_add_u32 v{XB}, s31, v{XB}
        """)
        if vtype:
            e(f"""
            v_lshl_add_u32 v{WB0}, v3, 5, v7
            v_add_u32 v{WB0}, v{WB0}, v6
            """)
        else:
            e(f"""
            v_lshl_add_u32 v{WB0}, v3, 5, v7
            v_add3_u32 v{WB0}, v{WB0}, v6, 40
            v_mul_u32_u24 v{WB3}, 288, v3
            v_add3_u32 v{WB3}, v{WB3}, v6, v7
            v_mul_u32_u24 v20, 72, v5
            v_add_u32 v20, 32, v20
            v_add_u32 v21, 256, v7
            v_cmp_eq_u32 vcc, 1, v3
            s_nop 1
            v_cndmask_b32 v20, v20, v21, vcc
            v_add_u32 v{WB4}, v20, v6
            """)
        for i in range(80):
            e(f"v_mov_b32 v{ACC+i}, 0")
        def setaddr():
            e(f"v_add_u32 v{XA}, s32, v{XB}")
            e(f"v_add_u32 v{WA0}, s32, v{WB0}")
            if not vtype:
                e(f"v_add_u32 v{WA3}, s32, v{WB3}")
                e(f"v_add_u32 v{WA4}, s32, v{WB4}")
            for ks in range(1, 4):
                e(f"v_xor_b32 v{XA+ks}, {32*ks}, v{XA}")
        def reads(ks, fs):
            R = [f"ds_read_b128 {vr(fs,4)}, v{XA+ks}"]
            for t in range(5):
                for q in range(2):
                    imm = (16*ks + 4*q) * 320
                    if vtype:
                        a = WA0; imm += 64*t
                    elif t < 3:
                        a = WA0; imm += 72*t
                    else:
                        a = WA3 if t == 3 else WA4
                    R.append(f"ds_read_b64_tr_b16 {vr(fs+4+4*t+2*q,2)}, v{a} offset:{imm}")
            return R
        def mfma(t, fs):
            xw = (vr(fs,4), vr(fs+4+4*t,4))
            a, b = (xw if vtype else xw[::-1])
            return f"v_mfma_f32_32x32x16_bf16 {vr(ACC+16*t,16)}, {a}, {b}, {vr(ACC+16*t,16)}"
        e("s_mov_b32 s32, 0")
        e("s_mov_b32 s33, 0")
        setaddr()
        stamp(e, 1)
        e("s_barrier")
        stamp(e, 2)
        for r in reads(0, F[0]): e(r)
        e(f"K1_LOOP_{tag}:")
        for ks in range(3):
            cur, nxt = F[ks & 1], F[(ks+1) & 1]
            R = reads(ks+1, nxt)
            split = [R[0:3], R[3:6], R[6:9], R[9:11], []]
            waits = [8, 9, 10, 11, 11]
            for t in range(5):
                e(f"s_waitcnt lgkmcnt({waits[t]})")
                e(mfma(t, cur))
                for r in split[t]: e(r)
        cur, nxt = F[1], F[0]
        e("s_waitcnt lgkmcnt(8)")
        e(mfma(0, cur))
        e("s_add_u32 s33, s33, 1")
        e("s_add_u32 s32, s32, %d" % STAGE)
        e("s_cmp_eq_u32 s32, %d" % (4*STAGE))
        e("s_cselect_b32 s32, 0, s32")
        e("s_waitcnt lgkmcnt(6)")
        e(mfma(1, cur))
        e("s_cmp_eq_u32 s33, 9")
        e("s_waitcnt lgkmcnt(0)")
        e(f"s_cbranch_scc1 K1_TAIL_{tag}")
        setaddr()
        e("s_barrier")
        R = reads(0, nxt)
        for r in R[0:5]: e(r)
        e(mfma(2, cur))
        for r in R[5:9]: e(r)
        e(mfma(3, cur))
        for r in R[9:11]: e(r)
        e(mfma(4, cur))
        e(f"s_branch K1_LOOP_{tag}")
        e(f"K1_TAIL_{tag}:")
        for t in (2, 3, 4): e(mfma(t, cur))
        stamp(e, 3)
        e("""
        s_lshl_b32 s34, s28, 2
        s_add_u32 s34, s34, s3
        s_lshr_b32 s35, s34, 3
        s_mul_i32 s35, s35, %d
        s_and_b32 s36, s34, 7
        s_and_b32 s37, s29, 3
        s_lshl_b32 s37, s37, 3
        """ % CHUNK)
        P = 24
        if not vtype:
            e(f"""
            s_mul_i32 s44, s37, {IMG}
            s_add_u32 s44, s44, s35
            s_lshl_b32 s45, s36, 10
            s_add_u32 s46, s44, s45
            s_lshl_b32 s45, s36, 7
            s_add_u32 s47, s44, s45
            s_add_u32 s47, s47, 8192
            s_mov_b32 s48, {IMG}
            s_mov_b32 s49, {IMG}
            s_mov_b32 s50, 1.0
            s_cmp_eq_u32 s30, 1
            s_cbranch_scc1 K1_EPQ_K
            s_cmp_eq_u32 s30, 3
            s_cselect_b32 s44, 32, 0
            s_add_u32 s44, s44, s37
            s_lshl_b32 s46, s44, 16
            s_lshl_b32 s45, s34, 10
            s_add_u32 s46, s46, s45
            s_add_u32 s46, s46, {QM_OFF}
            s_lshl_b32 s47, s44, 13
            s_lshl_b32 s45, s34, 7
            s_add_u32 s47, s47, s45
            s_add_u32 s47, s47, {QL_OFF}
            s_mov_b32 s48, 65536
            s_mov_b32 s49, 8192
            s_mov_b32 s50, {QSCALE:#x}
            K1_EPQ_K:
            v_lshlrev_b32 v8, 4, v0
            s_lshl_b32 s45, s49, 1
            v_mul_lo_u32 v9, v2, s45
            v_lshl_add_u32 v9, v1, 2, v9
            """)
            heads = [(1,2),(3,4),(5,6),(0,7)]
            for t in range(5):
                for i in range(16):
                    e(f"v_mul_f32 v{ACC+16*t+i}, s50, v{ACC+16*t+i}")
                for i in range(8):
                    e(f"v_cvt_pk_bf16_f32 v{P+8*t+i}, v{ACC+16*t+2*i}, v{ACC+16*t+2*i+1}")
                if t < 4:
                    for half in range(2):
                        e(f"s_mul_i32 s51, s48, {heads[t][half]}")
                        e("s_add_u32 s51, s51, s46")
                        e(f"buffer_store_dwordx4 {vr(P+8*t+4*half,4)}, v8, s[40:43], s51 offen")
                else:
                    for i in range(2):
                        for eo in range(2):
                            e(f"s_mul_i32 s51, s49, {4*i+eo}")
                            e("s_add_u32 s51, s51, s47")
                            e(f"buffer_store_dword v{P+32+2*i+eo}, v9, s[40:43], s51 offen")
            e(f"""
            s_and_b32 s44, s29, 14
            s_cmp_lg_u32 s44, 4
            s_cbranch_scc1 K1_END
            s_and_b32 s44, s29, 1
            s_add_u32 s45, s44, 32
            s_mul_i32 s45, s45, {IMG}
            s_add_u32 s45, s45, s35
            s_lshl_b32 s51, s36, 10
            s_add_u32 s45, s45, s51
            buffer_store_dwordx4 {vr(P+36,4)}, v8, s[40:43], s45 offen
            s_sub_u32 s45, 33, s44
            s_mul_i32 s45, s45, {IMG}
            s_add_u32 s45, s45, s35
            s_lshl_b32 s51, s36, 7
            s_add_u32 s45, s45, s51
            s_add_u32 s45, s45, 8192
            v_cmp_eq_u32 vcc, 1, v2
            v_lshlrev_b32 v10, 2, v1
            v_mov_b32 v11, 0x7ffffff0
            v_cndmask_b32 v12, v{P+36}, v{P+39}, vcc
            v_cmp_eq_u32 vcc, s44, v2
            s_nop 1
            v_cndmask_b32 v10, v11, v10, vcc
            buffer_store_dword v12, v10, s[40:43], s45 offen
            s_branch K1_END
            """)
        else:
            e(f"""
            s_mul_i32 s45, s36, 1152
            s_add_u32 s45, s45, s35
            s_add_u32 s45, s45, 9216
            s_mul_i32 s44, s37, {IMG}
            s_add_u32 s46, s44, s45
            s_mov_b32 s48, {IMG - 18*16}
            v_mul_u32_u24 v8, 288, v2
            """)
            for t in range(5):
                e(f"v_add_u32 v9, {32*t if t < 4 else 112}, v1")
                e("v_mul_u32_u24 v10, 3641, v9")
                e("v_lshrrev_b32 v10, 16, v10")
                e("v_mul_lo_u32 v10, v10, s48")
                e("v_lshl_add_u32 v9, v9, 4, v8")
                e(f"v_add_u32 v{12+t}, v9, v10")
                if t == 4:
                    e("v_mov_b32 v11, 0x7ffffff0")
                    e("v_cmp_le_u32 vcc, 16, v1")
                    e("s_nop 1")
                    e(f"v_cndmask_b32 v{12+t}, v11, v{12+t}, vcc")
                for i in range(8):
                    e(f"v_cvt_pk_bf16_f32 v{P+8*t+i}, v{ACC+16*t+2*i}, v{ACC+16*t+2*i+1}")
                for half in range(2):
                    e(f"buffer_store_dwordx4 {vr(P+8*t+4*half,4)}, v{12+t}, s[40:43], s46 offen offset:{576*half}")
            e(f"""
            s_and_b32 s44, s29, 14
            s_cmp_lg_u32 s44, 8
            s_cbranch_scc1 K1_END
            s_and_b32 s44, s29, 1
            s_lshl_b32 s44, s44, 5
            s_add_u32 s45, s45, s44
            s_add_u32 s45, s45, {32*IMG}
            s_add_u32 s46, s45, {IMG}
            v_lshl_add_u32 v9, v1, 4, v8
            v_cndmask_b32 v9, v9, v11, vcc
            buffer_store_dwordx4 {vr(P+32,4)}, v9, s[40:43], s45 offen
            buffer_store_dwordx4 {vr(P+36,4)}, v9, s[40:43], s45 offen offset:576
            buffer_store_dwordx4 {vr(P+32,4)}, v9, s[40:43], s46 offen
            buffer_store_dwordx4 {vr(P+36,4)}, v9, s[40:43], s46 offen offset:576
            s_branch K1_END
            """)
    e("K1_LOADER:")
    e("s_sub_u32 s3, s3, 4")
    srd(e, 20, 4, 5, X_BYTES)
    srd(e, 24, 14, 15, 1152)
    e(f"""
    v_and_b32 v1, 31, v0
    v_lshrrev_b32 v2, 5, v0
    s_lshl_b32 s30, s2, 3
    s_lshl_b32 s31, s3, 1
    s_add_u32 s30, s30, s31
    v_add_u32 v3, s30, v2
    v_mul_u32_u24 v4, 1152, v3
    v_lshlrev_b32 v5, 4, v1
    v_add_u32 v4, v4, v5
    v_mov_b32 v6, 0x7ffffff0
    v_cmp_gt_u32 vcc, 8, v1
    buffer_load_dwordx4 v[40:43], v4, s[20:23], 0 offen
    buffer_load_dwordx4 v[44:47], v4, s[20:23], 0 offen offset:512
    v_cndmask_b32 v6, v6, v4, vcc
    buffer_load_dwordx4 v[52:55], v5, s[24:27], 0 offen
    buffer_load_dwordx4 v[48:51], v6, s[20:23], 0 offen offset:1024
    buffer_load_dwordx4 v[56:59], v5, s[24:27], 0 offen offset:512
    buffer_load_dwordx4 v[60:63], v5, s[24:27], 0 offen offset:1024
    """)
    e(f"""
    s_lshl_b32 s30, s28, 7
    s_lshl_b32 s31, s3, 5
    s_add_u32 s30, s30, s31
    v_lshrrev_b32 v4, 3, v0
    v_add_u32 v4, s30, v4
    v_mul_u32_u24 v4, 1152, v4
    v_and_b32 v5, 7, v0
    v_lshrrev_b32 v6, 4, v0
    v_xor_b32 v5, v5, v6
    v_lshl_add_u32 v8, v5, 4, v4
    v_xor_b32 v5, 4, v5
    v_lshl_add_u32 v9, v5, 4, v4
    v_add_u32 v9, {8*1152}, v9
    v_add_u32 v10, {16*1152}, v8
    v_add_u32 v11, {16*1152}, v9
    """)
    e(f"""
    s_mul_i32 s30, s29, 288
    s_add_u32 s44, s6, s30
    s_addc_u32 s45, s7, 0
    s_mov_b32 s46, 3456
    s_cmp_lt_u32 s29, 12
    s_cbranch_scc1 K1_LW1
    s_sub_u32 s30, s30, {12*288}
    s_add_u32 s44, s8, s30
    s_addc_u32 s45, s9, 0
    s_mov_b32 s46, 1152
    K1_LW1:
    s_lshr_b32 s30, s29, 2
    s_cmp_eq_u32 s30, 2
    s_cselect_b32 s48, s12, s10
    s_cselect_b32 s49, s13, s11
    s_and_b32 s30, s29, 3
    s_cmp_eq_u32 s30, 1
    s_cselect_b32 s30, 4, 0
    s_add_u32 s48, s48, s30
    s_addc_u32 s49, s49, 0
    s_lshl_b32 s47, s46, 6
    s_lshl_b32 s31, s3, 4
    v_mov_b32 v34, s44
    v_mov_b32 v35, s45
    v_mov_b32 v36, s48
    v_mov_b32 v37, s49
    v_mov_b32 v38, s47
    v_mov_b32 v39, {64*36}
    """)
    WAD = 12
    for j in range(5):
        e(f"""
        v_add_u32 v4, {64*j}, v0
        v_mul_u32_u24 v5, 3277, v4
        v_lshrrev_b32 v5, 16, v5
        v_mul_u32_u24 v6, 20, v5
        v_sub_u32 v6, v4, v6
        v_add_u32 v5, s31, v5
        v_mul_lo_u32 v28, v5, s46
        v_subrev_u32 v29, 2, v6
        v_cmp_lt_u32 vcc, 17, v6
        v_mul_u32_u24 v30, 36, v5
        v_subrev_u32 v31, 16, v6
        v_cndmask_b32 v29, v6, v29, vcc
        v_lshl_add_u32 v28, v29, 4, v28
        v_lshl_add_u32 v30, v31, 4, v30
        v_cmp_gt_u32 vcc, 2, v31
        s_nop 1
        v_cndmask_b32 v28, v28, v30, vcc
        v_cndmask_b32 v29, v34, v36, vcc
        v_cndmask_b32 v30, v35, v37, vcc
        v_cndmask_b32 v{22+j}, v38, v39, vcc
        v_add_co_u32 v{WAD+2*j}, vcc, v29, v28
        s_nop 1
        v_addc_co_u32 v{WAD+2*j+1}, vcc, 0, v30, vcc
        """)
    e(f"""
    s_lshl_b32 s50, s3, 12
    s_mul_i32 s51, s3, 5120
    s_add_u32 s51, s51, 16384
    s_mov_b32 s52, 0
    s_mov_b32 s53, 0
    s_mov_b32 s55, 0
    """)
    stamp(e, 1)
    e(f"""
    K1_ISSUE:
    s_add_u32 s56, s55, s50
    s_add_u32 s57, s55, s51
    """)
    for j in range(4):
        e(f"s_add_u32 m0, s56, {1024*j}")
        e("s_nop 0")
        e(f"buffer_load_dwordx4 v{8+j}, s[20:23], s52 offen lds")
    for j in range(5):
        e(f"s_add_u32 m0, s57, {1024*j}")
        e("s_nop 0")
        e(f"global_load_lds_dwordx4 {vr(WAD+2*j,2)}, off")
        e(f"v_add_co_u32 v{WAD+2*j}, vcc, v{22+j}, v{WAD+2*j}")
        e("s_nop 1")
        e(f"v_addc_co_u32 v{WAD+2*j+1}, vcc, 0, v{WAD+2*j+1}, vcc")
    e(f"""
    s_add_u32 s52, s52, 128
    s_add_u32 s53, s53, 1
    s_add_u32 s55, s55, {STAGE}
    s_cmp_eq_u32 s55, {4*STAGE}
    s_cselect_b32 s55, 0, s55
    s_cmp_lt_u32 s53, 4
    s_cbranch_scc1 K1_ISSUE
    s_cmp_lg_u32 s53, 4
    s_cbranch_scc1 K1_LSYNC
    """)
    stamp(e, 2)
    e(f"""
    s_waitcnt vmcnt(27)
    s_barrier
    K1_LSYNC:
    s_waitcnt vmcnt(18)
    s_barrier
    s_cmp_lt_u32 s53, 9
    s_cbranch_scc1 K1_ISSUE
    """)
    stamp(e, 3)
    e("v_mov_b32 v4, 0")
    for i in range(12):
        e(f"v_dot2_f32_bf16 v4, v{40+i}, v{52+i}, v4")
    e("""
    s_waitcnt vmcnt(9)
    s_barrier
    s_nop 1
    v_add_f32_dpp v4, v4, v4 quad_perm:[1,0,3,2] row_mask:0xf bank_mask:0xf
    s_nop 1
    v_add_f32_dpp v4, v4, v4 quad_perm:[2,3,0,1] row_mask:0xf bank_mask:0xf
    s_nop 1
    v_add_f32_dpp v4, v4, v4 row_half_mirror row_mask:0xf bank_mask:0xf
    s_nop 1
    v_add_f32_dpp v4, v4, v4 row_mirror row_mask:0xf bank_mask:0xf
    v_mov_b32 v5, v4
    s_nop 1
    v_permlane16_swap_b32 v4, v5
    s_nop 1
    v_add_f32 v4, v4, v5
    v_mul_f32 v4, 0xbfb8aa3b, v4
    v_exp_f32 v4, v4
    s_nop 0
    v_add_f32 v4, 1.0, v4
    v_rcp_f32 v4, v4
    v_lshlrev_b32 v3, 2, v3
    v_mov_b32 v6, 0x7ffffff0
    v_cmp_eq_u32 vcc, 0, v1
    s_mov_b32 s30, %d
    s_waitcnt vmcnt(0)
    s_barrier
    v_cndmask_b32 v3, v6, v3, vcc
    buffer_store_dword v4, v3, s[40:43], s30 offen
    K1_END:
    """ % G_OFF)
    stamp(e, 4)
    if PROF: e("s_waitcnt vmcnt(0)")
    stamp(e, 5); stamp_rt(e, 7)
    stamp_out(e, 0, "s59", 40)
    e("K1_EXIT:\ns_endpgm")

def gen_k2(e):
    khead(e, "attn_kernel")
    AKM, AKL, AVT, IDX = 4, 5, 6, 7
    QM0, QM1, QL, KL, KM, V0, V1 = 8, 12, 16, 18, 20, 24, 28
    SA, SB, O0, O1 = 32, 64, 96, 112
    G0, G1 = 2, 3
    e("""
    s_cmp_ge_u32 s2, 256
    s_cbranch_scc1 K2_END
    s_load_dwordx2 s[4:5], s[0:1], 88
    s_load_dwordx2 s[6:7], s[0:1], 16
    s_load_dwordx2 s[8:9], s[0:1], 56
    v_lshrrev_b32 v1, 6, v0
    v_and_b32 v0, 63, v0
    s_and_b32 s10, s2, 7
    v_readfirstlane_b32 s3, v1
    s_lshr_b32 s11, s2, 5
    s_lshl_b32 s11, s11, 3
    s_add_u32 s10, s10, s11
    s_bfe_u32 s11, s2, 0x20003
    """)
    stamp(e, 0); stamp_rt(e, 6)
    e(f"""
    s_and_b32 s12, s10, 1
    s_add_u32 s12, s12, 32
    s_cmp_lt_u32 s10, 32
    s_cselect_b32 s12, s10, s12
    s_mul_i32 s12, s12, {IMG}
    s_lshl_b32 s13, s3, 10
    s_add_u32 s12, s12, s13
    s_lshl_b32 s14, s11, 4
    s_lshl_b32 s15, s3, 1
    s_add_u32 s14, s14, s15
    v_lshlrev_b32 v{AKM}, 4, v0
    s_waitcnt lgkmcnt(0)
    """)
    srd(e, 20, 4, 5, WS_SIZE)
    def dma(i):
        e(f"s_add_u32 m0, s13, {8192*i}")
        e(f"s_add_u32 s16, s12, {8192*i}")
        e(f"buffer_load_dwordx4 v{AKM}, s[20:23], s16 offen lds")
    e(f"""
    s_lshl_b32 s16, s10, 16
    s_lshl_b32 s17, s14, 10
    s_add_u32 s16, s16, s17
    s_add_u32 s16, s16, {QM_OFF}
    buffer_load_dwordx4 {vr(QM0,4)}, v{AKM}, s[20:23], s16 offen
    buffer_load_dwordx4 {vr(QM1,4)}, v{AKM}, s[20:23], s16 offen offset:1024
    s_lshl_b32 s16, s10, 13
    s_lshl_b32 s17, s14, 7
    s_add_u32 s16, s16, s17
    s_add_u32 s16, s16, {QL_OFF}
    v_lshlrev_b32 v1, 2, v0
    buffer_load_dword v{QL}, v1, s[20:23], s16 offen
    """)
    for i in range(3): dma(i)
    e(f"""
    s_add_u32 s16, s17, {G_OFF}
    v_and_b32 v{AKL}, 31, v0
    v_lshlrev_b32 v{AKL}, 2, v{AKL}
    buffer_load_dword v{G0}, v{AKL}, s[20:23], s16 offen
    buffer_load_dword v{G1}, v{AKL}, s[20:23], s16 offen offset:128
    """)
    for i in range(3, 18): dma(i)
    WJ = 128
    e(f"""
    s_lshl_b32 s30, s2, 3
    s_add_u32 s30, s30, s3
    s_mul_i32 s31, s30, 1821
    s_lshr_b32 s31, s31, 16
    s_mul_i32 s32, s31, 36
    s_sub_u32 s32, s30, s32
    """)
    e(f"""
    s_cmp_lt_u32 s31, 32
    s_cselect_b32 s33, 1, 0
    s_and_b32 s34, s31, 15
    s_mul_i32 s34, s34, {36*1152}
    s_and_b32 s35, s31, 1
    s_mul_i32 s35, s35, {288*1152}
    s_add_u32 s35, s35, {16*1152}
    s_lshr_b32 s37, s31, 4
    s_bfe_u32 s36, s31, 0x10001
    s_cmp_lt_u32 s31, 32
    s_cselect_b32 s34, s34, s35
    s_cselect_b32 s35, s37, s36
    s_cmp_eq_u32 s35, 0
    s_cselect_b32 s24, s6, s8
    s_cselect_b32 s25, s7, s9
    s_mov_b32 s26, {576*1152}
    s_mov_b32 s27, 0x00020000
    s_lshl_b32 s32, s32, 5
    s_add_u32 s34, s34, s32
    v_bfe_u32 v1, v0, 3, 2
    v_lshrrev_b32 v{WJ+4}, 1, v1
    v_mul_u32_u24 v{WJ+4}, 18, v{WJ+4}
    v_and_b32 v{WJ+5}, 1, v1
    v_lshl_add_u32 v{WJ+4}, v{WJ+5}, 2, v{WJ+4}
    v_mul_u32_u24 v{WJ+5}, 72, v1
    s_cmp_lt_u32 s31, 32
    s_cselect_b64 vcc, -1, 0
    v_cndmask_b32 v{WJ+4}, v{WJ+5}, v{WJ+4}, vcc
    v_mul_u32_u24 v{WJ+4}, 1152, v{WJ+4}
    v_lshrrev_b32 v1, 5, v0
    v_lshl_add_u32 v{WJ+4}, v1, 4, v{WJ+4}
    v_and_b32 v1, 7, v0
    v_lshl_add_u32 v{WJ+4}, v1, 1, v{WJ+4}
    s_cmp_lt_u32 s30, 1296
    s_cselect_b32 s34, s34, 0
    """)
    for j in range(8):
        jm = (8*(j>>2) + (j&3)) * 1152
        jl = (18*(j>>1) + (j&1)) * 1152
        e("s_cmp_eq_u32 s33, 1")
        e(f"s_mov_b32 s35, {jl}")
        e(f"s_cselect_b32 s35, {jm}, s35")
        e("s_add_u32 s35, s35, s34")
        e(f"buffer_load_ushort v{(WJ+8 if j & 1 else WJ)+(j>>1)}, v{WJ+4}, s[24:27], s35 offen")
    e(f"""
    v_add_u32 v{AKL}, 8192, v{AKL}
    v_and_b32 v1, 31, v0
    v_lshrrev_b32 v{AVT}, 5, v0
    v_mul_u32_u24 v{AVT}, 288, v{AVT}
    v_lshl_add_u32 v{AVT}, v1, 4, v{AVT}
    v_add_u32 v{AVT}, 9216, v{AVT}
    v_mov_b32 v{IDX}, 0xdddddddd
    v_mov_b32 v{QL+1}, 0
    v_mov_b32 v{KL+1}, 0x3f803f80
    s_mov_b32 s28, 0x0003ffff
    s_mov_b32 s29, 0x0003ffff
    """)
    for i in range(8): e(f"v_mov_b32 v{V0+i}, 0x3f803f80")
    for i in range(32): e(f"v_mov_b32 v{O0+i}, 0")
    for i in range(8): e(f"v_mov_b32 v{SB+24+i}, 0")
    def toff(t):
        c, i = divmod(t, 8)
        return c*CHUNK, i
    def rdKM(t):
        c, i = toff(t); return f"ds_read_b128 {vr(KM,4)}, v{AKM} offset:{c + 1024*i}"
    def rdKL(t):
        c, i = toff(t); return f"ds_read_b32 v{KL}, v{AKL} offset:{c + 128*i}"
    def rdV(t, h):
        c, i = toff(t)
        return ("s_mov_b64 exec, s[28:29]\n"
                f"ds_read_b128 {vr(V1 if h else V0,4)}, v{AVT} offset:{c + 1152*i + 576*h}\n"
                "s_mov_b64 exec, -1")
    def m2b(S): return f"v_mfma_f32_32x32x4_2b_bf16 {vr(S,32)}, {vr(KL,2)}, {vr(QL,2)}, 0"
    def qk(S, n): return f"v_mfma_f32_32x32x16_bf16 {vr(S+16*n,16)}, {vr(KM,4)}, {vr(QM1 if n else QM0,4)}, {vr(S+16*n,16)}"
    def pv(S, n, h): return f"v_smfmac_f32_32x32x32_bf16 {vr(O1 if n else O0,16)}, {vr(V1 if h else V0,4)}, {vr(S+16*n+8*h,8)}, v{IDX}"
    def ex(S, a, b): return "\n".join(f"v_exp_f32 v{S+i}, v{S+i}" for i in range(a, b+1))
    def maxtree(dst, S, first):
        L = []
        if first:
            L.append(f"v_max3_f32 v{dst}, v{S}, v{S+1}, v{S+2}")
            rest = list(range(3, 16))
        else:
            rest = list(range(0, 16))
        while rest:
            a = rest.pop(0)
            b = rest.pop(0) if rest else a
            L.append(f"v_max3_f32 v{dst}, v{dst}, v{S+a}, v{S+b}")
        return "\n".join(L)
    stamp(e, 1)
    e("s_waitcnt vmcnt(25)")
    e("s_barrier")
    stamp(e, 2)
    e(rdKL(0)); e(rdKM(0))
    e("s_waitcnt lgkmcnt(0)")
    e(m2b(SA))
    e("s_nop 15\ns_nop 3")
    e(qk(SA, 0)); e(qk(SA, 1))
    e("s_nop 15")
    e(maxtree(WJ+6, SA, True)); e(maxtree(WJ+7, SA+16, True))
    e(f"""
    s_nop 1
    v_permlane32_swap_b32 v{WJ+6}, v{WJ+7}
    s_nop 1
    v_max_f32 v{WJ+6}, v{WJ+6}, v{WJ+7}
    v_cvt_pk_bf16_f32 v{QL+1}, -v{WJ+6}, 0
    s_nop 1
    """)
    stamp(e, 3)
    e(m2b(SA))
    e(rdKL(1))
    e("s_nop 15\ns_nop 2")
    e(qk(SA, 0)); e(qk(SA, 1))
    e(rdKM(1)); e(rdV(0, 0))
    e("s_mov_b32 s18, 0")
    e("s_nop 9")
    e(".p2align 6")
    e("K2_LOOP:")
    for t in range(8):
        cur, nxt = (SA, SB) if t % 2 == 0 else (SB, SA)
        if t == 6:
            e("""
            s_cmp_eq_u32 s18, 0
            s_cbranch_scc1 K2_SYNC0
            s_cmp_eq_u32 s18, 3
            s_cbranch_scc1 K2_SYNC1
            K2_SYNC_RET:
            """)
        e(ex(cur, 0, 1))
        e(pv(nxt, 1, 1))
        e(rdV(t, 1))
        e(ex(cur, 2, 4))
        e("s_waitcnt lgkmcnt(3)")
        e(m2b(nxt))
        e(rdKL(t+2))
        e(ex(cur, 5, 12))
        e("s_waitcnt lgkmcnt(2)")
        e(pv(cur, 0, 0))
        e(ex(cur, 13, 17))
        e("s_waitcnt lgkmcnt(1)")
        e(pv(cur, 0, 1))
        e(ex(cur, 18, 20))
        e(qk(nxt, 0))
        e(ex(cur, 21, 23))
        e(qk(nxt, 1))
        e(rdKM(t+2))
        e(ex(cur, 24, 26))
        e(pv(cur, 1, 0))
        e(rdV(t+1, 0))
        if t == 7:
            e(f"""
            v_add_u32 v{AKM}, {CHUNK}, v{AKM}
            v_add_u32 v{AKL}, {CHUNK}, v{AKL}
            v_add_u32 v{AVT}, {CHUNK}, v{AVT}
            s_add_u32 s18, s18, 1
            s_cmp_lt_u32 s18, 8
            """)
        e(ex(cur, 27, 31))
    e("s_cbranch_scc1 K2_LOOP")
    e("s_nop 1")
    e(pv(SB, 1, 1))
    e("s_mov_b32 s19, 0")
    e("s_waitcnt lgkmcnt(0)")
    stamp(e, 4)
    e("s_nop 10")
    e("K2_FIN:")
    e("s_cmp_lg_u32 s19, 0")
    e("s_cbranch_scc1 K2_OUT")
    T = SA
    e(f"v_max_f32 v{T}, v{O0+10}, v{O1+10}")
    e(f"v_mov_b32 v{T+1}, 0")
    for i in range(11):
        e(f"v_fmac_f32 v{T}, v{O0+i}, v{T+1}")
        e(f"v_fmac_f32 v{T}, v{O1+i}, v{T+1}")
    e(f"""
    v_mov_b32 v{T+1}, 0x4e800000
    v_cmp_nlt_f32 vcc, v{T}, v{T+1}
    s_nop 4
    s_cmp_lg_u64 vcc, 0
    s_cbranch_scc1 K2_SLOW
    K2_OUT:
    s_cmp_lt_u32 s10, 32
    s_cbranch_scc1 K2_GA
    v_sub_f32 v{G0}, 1.0, v{G0}
    v_sub_f32 v{G1}, 1.0, v{G1}
    K2_GA:
    v_rcp_f32 v{T}, v{O0+10}
    v_rcp_f32 v{T+1}, v{O1+10}
    s_nop 0
    v_mul_f32 v{T}, v{T}, v{G0}
    v_mul_f32 v{T+1}, v{T+1}, v{G1}
    """)
    for n, O in enumerate((O0, O1)):
        for i in range(10):
            e(f"v_mul_f32 v{O+i}, v{O+i}, v{T+n}")
        for i in range(5):
            e(f"v_cvt_pk_bf16_f32 v{T+4+8*n+i}, v{O+2*i}, v{O+2*i+1}")
    e(f"""
    v_bfe_u32 v{T+2}, v0, 4, 1
    v_mul_u32_u24 v{T+2}, {36*1024}, v{T+2}
    v_and_b32 v{T+3}, 15, v0
    v_lshl_add_u32 v{T+2}, v{T+3}, 4, v{T+2}
    v_lshrrev_b32 v{T+3}, 5, v0
    v_lshl_add_u32 v{T+20}, v{T+3}, 8, v{T+2}
    v_mov_b32 v{T+21}, 0x7ffffff0
    v_cmp_eq_u32 vcc, 0, v{T+3}
    s_mul_i32 s16, s14, {72*1024}
    s_add_u32 s16, s16, {O_OFF}
    v_cndmask_b32 v{T+21}, v{T+21}, v{T+2}, vcc
    s_lshl_b32 s17, s10, 9
    s_add_u32 s17, s17, s16
    s_lshr_b32 s30, s10, 2
    s_lshl_b32 s30, s30, 8
    s_and_b32 s31, s10, 3
    s_lshl_b32 s31, s31, 2
    s_add_u32 s30, s30, s31
    s_add_u32 s30, s30, s16
    s_add_u32 s30, s30, {32*1024}
    buffer_store_dwordx4 {vr(T+4,4)}, v{T+20}, s[20:23], s17 offen
    buffer_store_dword v{T+8}, v{T+21}, s[20:23], s30 offen
    s_add_u32 s17, s17, {72*1024}
    s_add_u32 s30, s30, {72*1024}
    buffer_store_dwordx4 {vr(T+12,4)}, v{T+20}, s[20:23], s17 offen
    buffer_store_dword v{T+16}, v{T+21}, s[20:23], s30 offen
    """)
    if PROF: e("s_waitcnt vmcnt(0)")
    stamp(e, 5); stamp_rt(e, 7)
    stamp_out(e, 1, "s3", 20)
    e("K2_END:\ns_endpgm")
    e(f"""
    K2_SYNC0:
    s_waitcnt vmcnt(17)
    s_barrier
    s_branch K2_SYNC_RET
    K2_SYNC1:
    s_waitcnt vmcnt(0)
    s_barrier
    s_lshl_b32 s30, s30, 10
    s_add_u32 s30, s30, {WF_OFF}
    s_cmp_lt_u32 s30, {WF_OFF + 1296*1024}
    s_cbranch_scc0 K2_SYNC_RET
    v_lshlrev_b32 v{WJ+4}, 4, v0
    v_lshl_or_b32 v{WJ}, v{WJ+8}, 16, v{WJ}
    v_lshl_or_b32 v{WJ+1}, v{WJ+9}, 16, v{WJ+1}
    v_lshl_or_b32 v{WJ+2}, v{WJ+10}, 16, v{WJ+2}
    v_lshl_or_b32 v{WJ+3}, v{WJ+11}, 16, v{WJ+3}
    buffer_store_dwordx4 {vr(WJ,4)}, v{WJ+4}, s[20:23], s30 offen
    s_branch K2_SYNC_RET
    """)
    M0, M1 = WJ+6, WJ+7
    def rewind():
        e(f"""
        v_subrev_u32 v{AKM}, {8*CHUNK}, v{AKM}
        v_subrev_u32 v{AKL}, {8*CHUNK}, v{AKL}
        v_subrev_u32 v{AVT}, {8*CHUNK}, v{AVT}
        s_mov_b32 s18, 0
        """)
    def advance():
        e(f"""
        s_add_u32 s18, s18, 1
        s_and_b32 s16, s18, 7
        s_cmp_eq_u32 s16, 0
        s_mov_b32 s17, 1024
        s_cselect_b32 s16, {CHUNK-7*1024}, s17
        v_add_u32 v{AKM}, s16, v{AKM}
        s_mov_b32 s17, 128
        s_cselect_b32 s16, {CHUNK-7*128}, s17
        v_add_u32 v{AKL}, s16, v{AKL}
        s_mov_b32 s17, 1152
        s_cselect_b32 s16, {CHUNK-7*1152}, s17
        v_add_u32 v{AVT}, s16, v{AVT}
        s_cmp_lt_u32 s18, 64
        """)
    def scores():
        e(rdKL(0)); e(rdKM(0))
        e("s_waitcnt lgkmcnt(0)")
        e(m2b(SA))
        e("s_nop 15\ns_nop 3")
        e(qk(SA, 0)); e(qk(SA, 1))
        e("s_nop 15")
    e("K2_SLOW:")
    e(f"v_mov_b32 v{QL+1}, 0")
    e(f"v_mov_b32 v{M0}, 0xff800000")
    e(f"v_mov_b32 v{M1}, 0xff800000")
    rewind()
    e("K2_SLOW_A:")
    scores()
    e(maxtree(M0, SA, False)); e(maxtree(M1, SA+16, False))
    advance()
    e("s_cbranch_scc1 K2_SLOW_A")
    for M in (M0, M1):
        e(f"""
        v_mov_b32 v{WJ+5}, v{M}
        s_nop 1
        v_permlane32_swap_b32 v{M}, v{WJ+5}
        s_nop 1
        v_max_f32 v{M}, v{M}, v{WJ+5}
        """)
    for i in range(32): e(f"v_mov_b32 v{O0+i}, 0")
    rewind()
    e("K2_SLOW_B:")
    e(rdV(0, 0)); e(rdV(0, 1))
    scores()
    for i in range(32):
        e(f"v_sub_f32 v{SA+i}, v{SA+i}, v{M0 if i < 16 else M1}")
    e(ex(SA, 0, 31))
    e("s_nop 1")
    for n in range(2):
        for h in range(2):
            e(pv(SA, n, h))
    advance()
    e("s_cbranch_scc1 K2_SLOW_B")
    e("s_mov_b32 s19, 1")
    e("s_nop 15")
    e("s_branch K2_FIN")

def gen_k3(e):
    khead(e, "oproj_kernel")
    e("""
    s_cmp_ge_u32 s2, 256
    s_cbranch_scc1 K3_END
    s_load_dwordx2 s[4:5], s[0:1], 88
    s_load_dwordx2 s[6:7], s[0:1], 72
    v_lshrrev_b32 v1, 6, v0
    v_and_b32 v0, 63, v0
    s_and_b32 s10, s2, 3
    v_readfirstlane_b32 s3, v1
    s_lshl_b32 s10, s10, 3
    s_bfe_u32 s11, s2, 0x30003
    s_add_u32 s10, s10, s11
    s_bfe_u32 s11, s2, 0x10002
    s_lshl_b32 s11, s11, 2
    s_lshr_b32 s12, s2, 6
    s_add_u32 s11, s11, s12
    """)
    stamp(e, 0); stamp_rt(e, 6)
    e(f"""
    s_mul_i32 s12, s10, {4*36*1024}
    s_mul_i32 s13, s3, {9*1024}
    s_add_u32 s12, s12, s13
    s_add_u32 s12, s12, {O_OFF}
    s_mul_i32 s13, s3, {9*72*512}
    s_mul_i32 s14, s11, {9*512}
    s_add_u32 s13, s13, s14
    s_add_u32 s13, s13, {WF_OFF}
    v_lshlrev_b32 v1, 4, v0
    v_lshrrev_b32 v3, 4, v0
    v_lshlrev_b32 v3, 7, v3
    v_and_b32 v2, 7, v0
    v_lshl_add_u32 v3, v2, 4, v3
    v_bfe_u32 v2, v0, 3, 1
    v_lshl_add_u32 v2, v2, 9, v3
    s_waitcnt lgkmcnt(0)
    """)
    srd(e, 20, 4, 5, WS_SIZE)
    srd(e, 24, 6, 7, X_BYTES)
    def base(ks): return 4 + 36 * (ks % 7)
    def loads(ks):
        b = base(ks)
        for a in range(4):
            e(f"s_add_u32 s16, s12, {a*36*1024 + ks*1024}")
            e(f"buffer_load_dwordx4 {vr(b+4*a,4)}, v1, s[20:23], s16 offen")
        e(f"s_add_u32 s16, s13, {ks*72*512}")
        for t in range(4):
            e(f"buffer_load_dwordx4 {vr(b+16+4*t,4)}, v2, s[20:23], s16 offen offset:{1024*t}")
        e(f"s_add_u32 s16, s13, {ks*72*512 + 4096}")
        e(f"buffer_load_dwordx4 {vr(b+32,4)}, v3, s[20:23], s16 offen")
    for ks in range(7): loads(ks)
    stamp(e, 1)
    for ks in range(9):
        b = base(ks)
        issued = min(9, 7 + ks)
        e(f"s_waitcnt vmcnt({9*(issued - ks - 1)})")
        if ks == 0: stamp(e, 2)
        for t in range(5):
            for a in range(4):
                d = ar(4*(5*a+t), 4)
                c = "0" if ks == 0 else d
                e(f"v_mfma_f32_16x16x32_bf16 {d}, {vr(b+16+4*t,4)}, {vr(b+4*a,4)}, {c}")
        if ks + 7 < 9: loads(ks + 7)
    stamp(e, 3)
    e(f"""
    s_mul_i32 s16, s3, 5120
    v_add_u32 v4, s16, v1
    s_mul_i32 s16, s3, 20480
    v_add_u32 v5, s16, v1
    s_nop 7
    """)
    for a in range(4):
        for t in range(5):
            off = a*20480 + t*1024
            if off < 65536:
                e(f"ds_write_b128 v4, {ar(4*(5*a+t),4)} offset:{off}")
            else:
                e(f"v_add_u32 v6, 65536, v4")
                e(f"ds_write_b128 v6, {ar(4*(5*a+t),4)} offset:{off-65536}")
        if a == 1: e("s_waitcnt lgkmcnt(4)")
    e("s_waitcnt lgkmcnt(0)")
    e("s_barrier")
    for t in range(5):
        for w in range(4):
            e(f"ds_read_b128 {vr(8+16*t+4*w,4)}, v5 offset:{w*5120+t*1024}")
        if t == 2: e("s_waitcnt lgkmcnt(4)")
    e(f"""
    s_lshl_b32 s16, s10, 6
    s_lshl_b32 s17, s3, 4
    s_add_u32 s16, s16, s17
    s_mul_i32 s16, s16, 1152
    s_mul_i32 s17, s11, 144
    s_add_u32 s16, s16, s17
    v_and_b32 v2, 15, v0
    v_mul_u32_u24 v2, 1152, v2
    v_lshrrev_b32 v3, 4, v0
    v_lshl_add_u32 v2, v3, 3, v2
    v_mov_b32 v6, 0x7ffffff0
    v_cmp_gt_u32 vcc, 2, v3
    s_waitcnt lgkmcnt(0)
    v_cndmask_b32 v6, v6, v2, vcc
    """)
    for t in range(5):
        b = 8 + 16*t
        for r in range(4):
            e(f"v_add_f32 v{b+r}, v{b+r}, v{b+4+r}")
            e(f"v_add_f32 v{b+8+r}, v{b+8+r}, v{b+12+r}")
        for r in range(4):
            e(f"v_add_f32 v{b+r}, v{b+r}, v{b+8+r}")
        e(f"v_cvt_pk_bf16_f32 v{b+4}, v{b}, v{b+1}")
        e(f"v_cvt_pk_bf16_f32 v{b+5}, v{b+2}, v{b+3}")
        e(f"buffer_store_dwordx2 {vr(b+4,2)}, v{6 if t == 4 else 2}, s[24:27], s16 offen offset:{32*t}")
    stamp(e, 4)
    if PROF: e("s_waitcnt vmcnt(0)")
    stamp(e, 5); stamp_rt(e, 7)
    stamp_out(e, 2, "s3", 20)
    e("K3_END:")
    e("s_endpgm")

def main(out):
    ref = open(f"cdna_kernels/{NAME}.s.ref").read().split("\n")
    hdr = [l for l in ref if l.startswith(";") and "@launch" not in l and "Override launch" not in l and "grid=ceil" not in l]
    e = Em()
    gen_k1(e); gen_k2(e); gen_k3(e)
    txt = "\n".join(hdr) + "\n"
    txt += "; @launch kernel=proj_kernel grid=(256,1,1) block=(512,1,1) lds=147456\n"
    txt += "; @launch kernel=attn_kernel grid=(256,1,1) block=(512,1,1) lds=163840\n"
    txt += "; @launch kernel=oproj_kernel grid=(256,1,1) block=(256,1,1) lds=81920\n"
    txt += '.amdgcn_target "amdgcn-amd-amdhsa--gfx950"\n.text\n'
    txt += e.text()
    txt += '.section .rodata,"a"\n'
    txt += kdesc("proj_kernel", 152, 152)
    txt += kdesc("attn_kernel", 140, 140)
    txt += kdesc("oproj_kernel", 256+80, 256)
    open(out, "w").write(txt)

if __name__ == "__main__":
    main(sys.argv[1] if len(sys.argv) > 1 else f"cdna_kernels/{NAME}.s")
```

```python
import math, struct, sys

NAME = "gated_mix__softmax_full_mha__grouped_kv_mqa__prompt"

IMG   = 147456
CHUNK = 18432
KV_OFF = 0
QM_OFF = 0x500000
QL_OFF = 0x900000
G_OFF  = 0x980000
WF_OFF = 0xA00000
O_OFF  = 0xC00000
WS_SIZE = 0x1100000
X_BYTES = 2048*576*2

def f32bits(x): return struct.unpack("<I", struct.pack("<f", x))[0]
QSCALE = f32bits((18 ** -0.5) * math.log2(math.e))

class Em:
    def __init__(self): self.L = []
    def __call__(self, s=""):
        for line in s.split("\n"):
            line = line.strip()
            if not line: continue
            if line.endswith(":") or line.startswith("."):
                self.L.append(line)
            else:
                self.L.append("    " + line)
    def text(self): return "\n".join(self.L) + "\n"

def vr(a, n=1): return f"v{a}" if n == 1 else f"v[{a}:{a+n-1}]"
def ar(a, n=1): return f"a{a}" if n == 1 else f"a[{a}:{a+n-1}]"
def sr(a, n=1): return f"s{a}" if n == 1 else f"s[{a}:{a+n-1}]"

def srd(e, d, lo, hi, nbytes):
    e(f"s_mov_b32 s{d}, s{lo}")
    e(f"s_mov_b32 s{d+1}, s{hi}")
    e(f"s_mov_b32 s{d+2}, {nbytes}")
    e(f"s_mov_b32 s{d+3}, 0x00020000")

import os
PROF = os.environ.get("PROF", "0") == "1"
TS_OFF = 0x10C0000
def stamp(e, i):
    if not PROF: return
    e(f"s_memtime s[{60+2*i}:{61+2*i}]")
    e("s_waitcnt lgkmcnt(0)")
def stamp_rt(e, i):
    if not PROF: return
    e(f"s_memrealtime s[{60+2*i}:{61+2*i}]")
    e("s_waitcnt lgkmcnt(0)")
def stamp_out(e, kidx, wavereg, srdbase, n=8):
    if not PROF: return
    e(f"s_lshl_b32 s58, s2, 3")
    e(f"s_add_u32 s58, s58, {wavereg}")
    e(f"s_lshl_b32 s58, s58, 5")
    e(f"s_add_u32 s58, s58, {TS_OFF + kidx*65536}")
    e("s_mov_b64 exec, 1")
    e("v_mov_b32 v1, 0")
    for i in range(n):
        e(f"v_mov_b32 v2, s{60+2*i}")
        e(f"buffer_store_dword v2, v1, s[{srdbase}:{srdbase+3}], s58 offen offset:{4*i}")
        e("s_nop 1")

def khead(e, name):
    e(f".globl {name}")
    e(".p2align 8")
    e(f".type {name},@function")
    e(f"{name}:")

def kdesc(name, nvgpr, accum, nsgpr=96):
    return f""".p2align 6
.amdhsa_kernel {name}
  .amdhsa_next_free_vgpr {nvgpr}
  .amdhsa_next_free_sgpr {nsgpr}
  .amdhsa_accum_offset {accum}
  .amdhsa_group_segment_fixed_size 0
  .amdhsa_kernarg_size 96
  .amdhsa_user_sgpr_count 2
  .amdhsa_user_sgpr_kernarg_segment_ptr 1
  .amdhsa_system_sgpr_workgroup_id_x 1
.end_amdhsa_kernel
"""

STAGE = 36864
def gen_k1(e):
    khead(e, "proj_kernel")
    e("""
    s_cmp_ge_u32 s2, 256
    s_cbranch_scc1 K1_EXIT
    s_load_dwordx4 s[4:7], s[0:1], 0
    s_load_dwordx4 s[8:11], s[0:1], 32
    s_load_dwordx2 s[12:13], s[0:1], 48
    s_load_dwordx2 s[14:15], s[0:1], 64
    s_load_dwordx2 s[16:17], s[0:1], 88
    v_lshrrev_b32 v1, 6, v0
    v_and_b32 v0, 63, v0
    s_and_b32 s18, s2, 7
    v_readfirstlane_b32 s3, v1
    s_lshr_b32 s19, s2, 3
    s_and_b32 s28, s18, 1
    s_lshl_b32 s28, s28, 3
    s_and_b32 s29, s19, 7
    s_add_u32 s28, s28, s29
    s_lshr_b32 s29, s18, 1
    s_lshl_b32 s29, s29, 2
    s_lshr_b32 s30, s19, 3
    s_add_u32 s29, s29, s30
    """)
    stamp(e, 0); stamp_rt(e, 6)
    if PROF: e("s_mov_b32 s59, s3")
    e("s_waitcnt lgkmcnt(0)")
    srd(e, 40, 16, 17, WS_SIZE)
    e("""
    s_cmp_ge_u32 s3, 4
    s_cbranch_scc1 K1_LOADER
    """)
    e("""
    v_and_b32 v1, 31, v0
    v_lshrrev_b32 v2, 5, v0
    v_bfe_u32 v3, v0, 4, 1
    v_bfe_u32 v4, v0, 2, 2
    v_and_b32 v5, 3, v0
    s_lshr_b32 s30, s29, 2
    """)
    e("""
    v_lshl_add_u32 v6, v2, 3, v4
    v_mul_u32_u24 v6, 320, v6
    v_add_u32 v6, 16384, v6
    v_lshlrev_b32 v7, 3, v5
    s_cmp_eq_u32 s30, 2
    s_cbranch_scc1 K1_VTYPE
    """)
    XB, WB0, WB3, WB4 = 8, 9, 10, 11
    XA = 12
    WA0, WA3, WA4 = 16, 17, 18
    F = [24, 48]
    ACC = 72
    for vtype in (0, 1):
        tag = "V" if vtype else "Q"
        if vtype: e("K1_VTYPE:")
        if vtype:
            e("""
            v_and_b32 v19, 0x13, v1
            v_bfe_u32 v20, v1, 2, 1
            v_lshl_or_b32 v19, v20, 3, v19
            v_bfe_u32 v20, v1, 3, 1
            v_lshl_or_b32 v19, v20, 2, v19
            """)
        else:
            e("v_mov_b32 v19, v1")
        e(f"""
        v_bfe_u32 v20, v19, 1, 3
        v_xor_b32 v20, v20, v2
        v_lshlrev_b32 v20, 4, v20
        v_lshl_add_u32 v{XB}, v19, 7, v20
        s_lshl_b32 s31, s3, 12
        v_add_u32 v{XB}, s31, v{XB}
        """)
        if vtype:
            e(f"""
            v_lshl_add_u32 v{WB0}, v3, 5, v7
            v_add_u32 v{WB0}, v{WB0}, v6
            """)
        else:
            e(f"""
            v_lshl_add_u32 v{WB0}, v3, 5, v7
            v_add3_u32 v{WB0}, v{WB0}, v6, 40
            v_mul_u32_u24 v{WB3}, 288, v3
            v_add3_u32 v{WB3}, v{WB3}, v6, v7
            v_mul_u32_u24 v20, 72, v5
            v_add_u32 v20, 32, v20
            v_add_u32 v21, 256, v7
            v_cmp_eq_u32 vcc, 1, v3
            s_nop 1
            v_cndmask_b32 v20, v20, v21, vcc
            v_add_u32 v{WB4}, v20, v6
            """)
        for i in range(80):
            e(f"v_mov_b32 v{ACC+i}, 0")
        def setaddr():
            e(f"v_add_u32 v{XA}, s32, v{XB}")
            e(f"v_add_u32 v{WA0}, s32, v{WB0}")
            if not vtype:
                e(f"v_add_u32 v{WA3}, s32, v{WB3}")
                e(f"v_add_u32 v{WA4}, s32, v{WB4}")
            for ks in range(1, 4):
                e(f"v_xor_b32 v{XA+ks}, {32*ks}, v{XA}")
        def reads(ks, fs):
            R = [f"ds_read_b128 {vr(fs,4)}, v{XA+ks}"]
            for t in range(5):
                for q in range(2):
                    imm = (16*ks + 4*q) * 320
                    if vtype:
                        a = WA0; imm += 64*t
                    elif t < 3:
                        a = WA0; imm += 72*t
                    else:
                        a = WA3 if t == 3 else WA4
                    R.append(f"ds_read_b64_tr_b16 {vr(fs+4+4*t+2*q,2)}, v{a} offset:{imm}")
            return R
        def mfma(t, fs):
            xw = (vr(fs,4), vr(fs+4+4*t,4))
            a, b = (xw if vtype else xw[::-1])
            return f"v_mfma_f32_32x32x16_bf16 {vr(ACC+16*t,16)}, {a}, {b}, {vr(ACC+16*t,16)}"
        e("s_mov_b32 s32, 0")
        e("s_mov_b32 s33, 0")
        setaddr()
        stamp(e, 1)
        e("s_barrier")
        stamp(e, 2)
        for r in reads(0, F[0]): e(r)
        e(f"K1_LOOP_{tag}:")
        for ks in range(3):
            cur, nxt = F[ks & 1], F[(ks+1) & 1]
            R = reads(ks+1, nxt)
            split = [R[0:3], R[3:6], R[6:9], R[9:11], []]
            waits = [8, 9, 10, 11, 11]
            for t in range(5):
                e(f"s_waitcnt lgkmcnt({waits[t]})")
                e(mfma(t, cur))
                for r in split[t]: e(r)
        cur, nxt = F[1], F[0]
        e("s_waitcnt lgkmcnt(8)")
        e(mfma(0, cur))
        e("s_add_u32 s33, s33, 1")
        e("s_add_u32 s32, s32, %d" % STAGE)
        e("s_cmp_eq_u32 s32, %d" % (4*STAGE))
        e("s_cselect_b32 s32, 0, s32")
        e("s_waitcnt lgkmcnt(6)")
        e(mfma(1, cur))
        e("s_cmp_eq_u32 s33, 9")
        e("s_waitcnt lgkmcnt(0)")
        e(f"s_cbranch_scc1 K1_TAIL_{tag}")
        setaddr()
        e("s_barrier")
        R = reads(0, nxt)
        for r in R[0:5]: e(r)
        e(mfma(2, cur))
        for r in R[5:9]: e(r)
        e(mfma(3, cur))
        for r in R[9:11]: e(r)
        e(mfma(4, cur))
        e(f"s_branch K1_LOOP_{tag}")
        e(f"K1_TAIL_{tag}:")
        for t in (2, 3, 4): e(mfma(t, cur))
        stamp(e, 3)
        e("""
        s_lshl_b32 s34, s28, 2
        s_add_u32 s34, s34, s3
        s_lshr_b32 s35, s34, 3
        s_mul_i32 s35, s35, %d
        s_and_b32 s36, s34, 7
        s_and_b32 s37, s29, 3
        s_lshl_b32 s37, s37, 3
        """ % CHUNK)
        P = 24
        if not vtype:
            e(f"""
            s_mul_i32 s44, s37, {IMG}
            s_add_u32 s44, s44, s35
            s_lshl_b32 s45, s36, 10
            s_add_u32 s46, s44, s45
            s_lshl_b32 s45, s36, 7
            s_add_u32 s47, s44, s45
            s_add_u32 s47, s47, 8192
            s_mov_b32 s48, {IMG}
            s_mov_b32 s49, {IMG}
            s_mov_b32 s50, 1.0
            s_cmp_eq_u32 s30, 1
            s_cbranch_scc1 K1_EPQ_K
            s_cmp_eq_u32 s30, 3
            s_cselect_b32 s44, 32, 0
            s_add_u32 s44, s44, s37
            s_lshl_b32 s46, s44, 16
            s_lshl_b32 s45, s34, 10
            s_add_u32 s46, s46, s45
            s_add_u32 s46, s46, {QM_OFF}
            s_lshl_b32 s47, s44, 13
            s_lshl_b32 s45, s34, 7
            s_add_u32 s47, s47, s45
            s_add_u32 s47, s47, {QL_OFF}
            s_mov_b32 s48, 65536
            s_mov_b32 s49, 8192
            s_mov_b32 s50, {QSCALE:#x}
            K1_EPQ_K:
            v_lshlrev_b32 v8, 4, v0
            s_lshl_b32 s45, s49, 1
            v_mul_lo_u32 v9, v2, s45
            v_lshl_add_u32 v9, v1, 2, v9
            """)
            heads = [(1,2),(3,4),(5,6),(0,7)]
            for t in range(5):
                for i in range(16):
                    e(f"v_mul_f32 v{ACC+16*t+i}, s50, v{ACC+16*t+i}")
                for i in range(8):
                    e(f"v_cvt_pk_bf16_f32 v{P+8*t+i}, v{ACC+16*t+2*i}, v{ACC+16*t+2*i+1}")
                if t < 4:
                    for half in range(2):
                        e(f"s_mul_i32 s51, s48, {heads[t][half]}")
                        e("s_add_u32 s51, s51, s46")
                        e(f"buffer_store_dwordx4 {vr(P+8*t+4*half,4)}, v8, s[40:43], s51 offen")
                else:
                    for i in range(2):
                        for eo in range(2):
                            e(f"s_mul_i32 s51, s49, {4*i+eo}")
                            e("s_add_u32 s51, s51, s47")
                            e(f"buffer_store_dword v{P+32+2*i+eo}, v9, s[40:43], s51 offen")
            e(f"""
            s_and_b32 s44, s29, 14
            s_cmp_lg_u32 s44, 4
            s_cbranch_scc1 K1_END
            s_and_b32 s44, s29, 1
            s_add_u32 s45, s44, 32
            s_mul_i32 s45, s45, {IMG}
            s_add_u32 s45, s45, s35
            s_lshl_b32 s51, s36, 10
            s_add_u32 s45, s45, s51
            buffer_store_dwordx4 {vr(P+36,4)}, v8, s[40:43], s45 offen
            s_sub_u32 s45, 33, s44
            s_mul_i32 s45, s45, {IMG}
            s_add_u32 s45, s45, s35
            s_lshl_b32 s51, s36, 7
            s_add_u32 s45, s45, s51
            s_add_u32 s45, s45, 8192
            v_cmp_eq_u32 vcc, 1, v2
            v_lshlrev_b32 v10, 2, v1
            v_mov_b32 v11, 0x7ffffff0
            v_cndmask_b32 v12, v{P+36}, v{P+39}, vcc
            v_cmp_eq_u32 vcc, s44, v2
            s_nop 1
            v_cndmask_b32 v10, v11, v10, vcc
            buffer_store_dword v12, v10, s[40:43], s45 offen
            s_branch K1_END
            """)
        else:
            e(f"""
            s_mul_i32 s45, s36, 1152
            s_add_u32 s45, s45, s35
            s_add_u32 s45, s45, 9216
            s_mul_i32 s44, s37, {IMG}
            s_add_u32 s46, s44, s45
            s_mov_b32 s48, {IMG - 18*16}
            v_mul_u32_u24 v8, 288, v2
            """)
            for t in range(5):
                e(f"v_add_u32 v9, {32*t if t < 4 else 112}, v1")
                e("v_mul_u32_u24 v10, 3641, v9")
                e("v_lshrrev_b32 v10, 16, v10")
                e("v_mul_lo_u32 v10, v10, s48")
                e("v_lshl_add_u32 v9, v9, 4, v8")
                e(f"v_add_u32 v{12+t}, v9, v10")
                if t == 4:
                    e("v_mov_b32 v11, 0x7ffffff0")
                    e("v_cmp_le_u32 vcc, 16, v1")
                    e("s_nop 1")
                    e(f"v_cndmask_b32 v{12+t}, v11, v{12+t}, vcc")
                for i in range(8):
                    e(f"v_cvt_pk_bf16_f32 v{P+8*t+i}, v{ACC+16*t+2*i}, v{ACC+16*t+2*i+1}")
                for half in range(2):
                    e(f"buffer_store_dwordx4 {vr(P+8*t+4*half,4)}, v{12+t}, s[40:43], s46 offen offset:{576*half}")
            e(f"""
            s_and_b32 s44, s29, 14
            s_cmp_lg_u32 s44, 8
            s_cbranch_scc1 K1_END
            s_and_b32 s44, s29, 1
            s_lshl_b32 s44, s44, 5
            s_add_u32 s45, s45, s44
            s_add_u32 s45, s45, {32*IMG}
            s_add_u32 s46, s45, {IMG}
            v_lshl_add_u32 v9, v1, 4, v8
            v_cndmask_b32 v9, v9, v11, vcc
            buffer_store_dwordx4 {vr(P+32,4)}, v9, s[40:43], s45 offen
            buffer_store_dwordx4 {vr(P+36,4)}, v9, s[40:43], s45 offen offset:576
            buffer_store_dwordx4 {vr(P+32,4)}, v9, s[40:43], s46 offen
            buffer_store_dwordx4 {vr(P+36,4)}, v9, s[40:43], s46 offen offset:576
            s_branch K1_END
            """)
    e("K1_LOADER:")
    e("s_sub_u32 s3, s3, 4")
    srd(e, 20, 4, 5, X_BYTES)
    srd(e, 24, 14, 15, 1152)
    e(f"""
    v_and_b32 v1, 31, v0
    v_lshrrev_b32 v2, 5, v0
    s_lshl_b32 s30, s2, 3
    s_lshl_b32 s31, s3, 1
    s_add_u32 s30, s30, s31
    v_add_u32 v3, s30, v2
    v_mul_u32_u24 v4, 1152, v3
    v_lshlrev_b32 v5, 4, v1
    v_add_u32 v4, v4, v5
    v_mov_b32 v6, 0x7ffffff0
    v_cmp_gt_u32 vcc, 8, v1
    buffer_load_dwordx4 v[40:43], v4, s[20:23], 0 offen
    buffer_load_dwordx4 v[44:47], v4, s[20:23], 0 offen offset:512
    v_cndmask_b32 v6, v6, v4, vcc
    buffer_load_dwordx4 v[52:55], v5, s[24:27], 0 offen
    buffer_load_dwordx4 v[48:51], v6, s[20:23], 0 offen offset:1024
    buffer_load_dwordx4 v[56:59], v5, s[24:27], 0 offen offset:512
    buffer_load_dwordx4 v[60:63], v5, s[24:27], 0 offen offset:1024
    """)
    if os.environ.get("PREF", "0") == "1":
        e("""
        s_lshl_b32 s30, s2, 2
        s_add_u32 s30, s30, s3
        s_lshl_b32 s30, s30, 13
        v_lshlrev_b32 v4, 7, v0
        buffer_load_dword v64, v4, s[40:43], s30 offen
        s_add_u32 s30, s30, 0x800000
        buffer_load_dword v65, v4, s[40:43], s30 offen
        """)
    e(f"""
    s_lshl_b32 s30, s28, 7
    s_lshl_b32 s31, s3, 5
    s_add_u32 s30, s30, s31
    v_lshrrev_b32 v4, 3, v0
    v_add_u32 v4, s30, v4
    v_mul_u32_u24 v4, 1152, v4
    v_and_b32 v5, 7, v0
    v_lshrrev_b32 v6, 4, v0
    v_xor_b32 v5, v5, v6
    v_lshl_add_u32 v8, v5, 4, v4
    v_xor_b32 v5, 4, v5
    v_lshl_add_u32 v9, v5, 4, v4
    v_add_u32 v9, {8*1152}, v9
    v_add_u32 v10, {16*1152}, v8
    v_add_u32 v11, {16*1152}, v9
    """)
    e(f"""
    s_mul_i32 s30, s29, 288
    s_add_u32 s44, s6, s30
    s_addc_u32 s45, s7, 0
    s_mov_b32 s46, 3456
    s_cmp_lt_u32 s29, 12
    s_cbranch_scc1 K1_LW1
    s_sub_u32 s30, s30, {12*288}
    s_add_u32 s44, s8, s30
    s_addc_u32 s45, s9, 0
    s_mov_b32 s46, 1152
    K1_LW1:
    s_lshr_b32 s30, s29, 2
    s_cmp_eq_u32 s30, 2
    s_cselect_b32 s48, s12, s10
    s_cselect_b32 s49, s13, s11
    s_and_b32 s30, s29, 3
    s_cmp_eq_u32 s30, 1
    s_cselect_b32 s30, 4, 0
    s_add_u32 s48, s48, s30
    s_addc_u32 s49, s49, 0
    s_lshl_b32 s47, s46, 6
    s_lshl_b32 s31, s3, 4
    v_mov_b32 v34, s44
    v_mov_b32 v35, s45
    v_mov_b32 v36, s48
    v_mov_b32 v37, s49
    v_mov_b32 v38, s47
    v_mov_b32 v39, {64*36}
    """)
    WAD = 12
    for j in range(5):
        e(f"""
        v_add_u32 v4, {64*j}, v0
        v_mul_u32_u24 v5, 3277, v4
        v_lshrrev_b32 v5, 16, v5
        v_mul_u32_u24 v6, 20, v5
        v_sub_u32 v6, v4, v6
        v_add_u32 v5, s31, v5
        v_mul_lo_u32 v28, v5, s46
        v_subrev_u32 v29, 2, v6
        v_cmp_lt_u32 vcc, 17, v6
        v_mul_u32_u24 v30, 36, v5
        v_subrev_u32 v31, 16, v6
        v_cndmask_b32 v29, v6, v29, vcc
        v_lshl_add_u32 v28, v29, 4, v28
        v_lshl_add_u32 v30, v31, 4, v30
        v_cmp_gt_u32 vcc, 2, v31
        s_nop 1
        v_cndmask_b32 v28, v28, v30, vcc
        v_cndmask_b32 v29, v34, v36, vcc
        v_cndmask_b32 v30, v35, v37, vcc
        v_cndmask_b32 v{22+j}, v38, v39, vcc
        v_add_co_u32 v{WAD+2*j}, vcc, v29, v28
        s_nop 1
        v_addc_co_u32 v{WAD+2*j+1}, vcc, 0, v30, vcc
        """)
    e(f"""
    s_lshl_b32 s50, s3, 12
    s_mul_i32 s51, s3, 5120
    s_add_u32 s51, s51, 16384
    s_mov_b32 s52, 0
    s_mov_b32 s53, 0
    s_mov_b32 s55, 0
    """)
    stamp(e, 1)
    e(f"""
    K1_ISSUE:
    s_add_u32 s56, s55, s50
    s_add_u32 s57, s55, s51
    """)
    for j in range(4):
        e(f"s_add_u32 m0, s56, {1024*j}")
        e("s_nop 0")
        e(f"buffer_load_dwordx4 v{8+j}, s[20:23], s52 offen lds")
    for j in range(5):
        e(f"s_add_u32 m0, s57, {1024*j}")
        e("s_nop 0")
        e(f"global_load_lds_dwordx4 {vr(WAD+2*j,2)}, off")
        e(f"v_add_co_u32 v{WAD+2*j}, vcc, v{22+j}, v{WAD+2*j}")
        e("s_nop 1")
        e(f"v_addc_co_u32 v{WAD+2*j+1}, vcc, 0, v{WAD+2*j+1}, vcc")
    e(f"""
    s_add_u32 s52, s52, 128
    s_add_u32 s53, s53, 1
    s_add_u32 s55, s55, {STAGE}
    s_cmp_eq_u32 s55, {4*STAGE}
    s_cselect_b32 s55, 0, s55
    s_cmp_lt_u32 s53, 4
    s_cbranch_scc1 K1_ISSUE
    s_cmp_lg_u32 s53, 4
    s_cbranch_scc1 K1_LSYNC
    """)
    stamp(e, 2)
    e(f"""
    s_waitcnt vmcnt(27)
    s_barrier
    K1_LSYNC:
    s_waitcnt vmcnt(18)
    s_barrier
    s_cmp_lt_u32 s53, 9
    s_cbranch_scc1 K1_ISSUE
    """)
    stamp(e, 3)
    e("v_mov_b32 v4, 0")
    for i in range(12):
        e(f"v_dot2_f32_bf16 v4, v{40+i}, v{52+i}, v4")
    e("""
    s_waitcnt vmcnt(9)
    s_barrier
    s_nop 1
    v_add_f32_dpp v4, v4, v4 quad_perm:[1,0,3,2] row_mask:0xf bank_mask:0xf
    s_nop 1
    v_add_f32_dpp v4, v4, v4 quad_perm:[2,3,0,1] row_mask:0xf bank_mask:0xf
    s_nop 1
    v_add_f32_dpp v4, v4, v4 row_half_mirror row_mask:0xf bank_mask:0xf
    s_nop 1
    v_add_f32_dpp v4, v4, v4 row_mirror row_mask:0xf bank_mask:0xf
    v_mov_b32 v5, v4
    s_nop 1
    v_permlane16_swap_b32 v4, v5
    s_nop 1
    v_add_f32 v4, v4, v5
    v_mul_f32 v4, 0xbfb8aa3b, v4
    v_exp_f32 v4, v4
    s_nop 0
    v_add_f32 v4, 1.0, v4
    v_rcp_f32 v4, v4
    v_lshlrev_b32 v3, 2, v3
    v_mov_b32 v6, 0x7ffffff0
    v_cmp_eq_u32 vcc, 0, v1
    s_mov_b32 s30, %d
    s_waitcnt vmcnt(0)
    s_barrier
    v_cndmask_b32 v3, v6, v3, vcc
    buffer_store_dword v4, v3, s[40:43], s30 offen
    K1_END:
    """ % G_OFF)
    stamp(e, 4)
    if PROF: e("s_waitcnt vmcnt(0)")
    stamp(e, 5); stamp_rt(e, 7)
    stamp_out(e, 0, "s59", 40)
    e("K1_EXIT:\ns_endpgm")

def gen_k2(e):
    khead(e, "attn_kernel")
    AKM, AKL, AVT, IDX = 4, 5, 6, 7
    QM0, QM1, QL, KL, KM, V0, V1 = 8, 12, 16, 18, 20, 24, 28
    SA, SB, O0, O1 = 32, 64, 96, 112
    G0, G1 = 2, 3
    e("""
    s_cmp_ge_u32 s2, 256
    s_cbranch_scc1 K2_END
    s_load_dwordx2 s[4:5], s[0:1], 88
    s_load_dwordx2 s[6:7], s[0:1], 16
    s_load_dwordx2 s[8:9], s[0:1], 56
    v_lshrrev_b32 v1, 6, v0
    v_and_b32 v0, 63, v0
    s_and_b32 s10, s2, 7
    v_readfirstlane_b32 s3, v1
    s_lshr_b32 s11, s2, 5
    s_lshl_b32 s11, s11, 3
    s_add_u32 s10, s10, s11
    s_bfe_u32 s11, s2, 0x20003
    """)
    stamp(e, 0); stamp_rt(e, 6)
    e(f"""
    s_and_b32 s12, s10, 1
    s_add_u32 s12, s12, 32
    s_cmp_lt_u32 s10, 32
    s_cselect_b32 s12, s10, s12
    s_mul_i32 s12, s12, {IMG}
    s_lshl_b32 s13, s3, 10
    s_add_u32 s12, s12, s13
    s_lshl_b32 s14, s11, 4
    s_lshl_b32 s15, s3, 1
    s_add_u32 s14, s14, s15
    v_lshlrev_b32 v{AKM}, 4, v0
    s_waitcnt lgkmcnt(0)
    """)
    srd(e, 20, 4, 5, WS_SIZE)
    def dma(i):
        e(f"s_add_u32 m0, s13, {8192*i}")
        e(f"s_add_u32 s16, s12, {8192*i}")
        e(f"buffer_load_dwordx4 v{AKM}, s[20:23], s16 offen lds")
    e(f"""
    s_lshl_b32 s16, s10, 16
    s_lshl_b32 s17, s14, 10
    s_add_u32 s16, s16, s17
    s_add_u32 s16, s16, {QM_OFF}
    buffer_load_dwordx4 {vr(QM0,4)}, v{AKM}, s[20:23], s16 offen
    buffer_load_dwordx4 {vr(QM1,4)}, v{AKM}, s[20:23], s16 offen offset:1024
    s_lshl_b32 s16, s10, 13
    s_lshl_b32 s17, s14, 7
    s_add_u32 s16, s16, s17
    s_add_u32 s16, s16, {QL_OFF}
    v_lshlrev_b32 v1, 2, v0
    buffer_load_dword v{QL}, v1, s[20:23], s16 offen
    """)
    for i in range(3): dma(i)
    e(f"""
    s_add_u32 s16, s17, {G_OFF}
    v_and_b32 v{AKL}, 31, v0
    v_lshlrev_b32 v{AKL}, 2, v{AKL}
    buffer_load_dword v{G0}, v{AKL}, s[20:23], s16 offen
    buffer_load_dword v{G1}, v{AKL}, s[20:23], s16 offen offset:128
    """)
    for i in range(3, 18): dma(i)
    WJ = 128
    e(f"""
    s_lshl_b32 s30, s2, 3
    s_add_u32 s30, s30, s3
    s_mul_i32 s31, s30, 1821
    s_lshr_b32 s31, s31, 16
    s_mul_i32 s32, s31, 36
    s_sub_u32 s32, s30, s32
    """)
    e(f"""
    s_cmp_lt_u32 s31, 32
    s_cselect_b32 s33, 1, 0
    s_and_b32 s34, s31, 15
    s_mul_i32 s34, s34, {36*1152}
    s_and_b32 s35, s31, 1
    s_mul_i32 s35, s35, {288*1152}
    s_add_u32 s35, s35, {16*1152}
    s_lshr_b32 s37, s31, 4
    s_bfe_u32 s36, s31, 0x10001
    s_cmp_lt_u32 s31, 32
    s_cselect_b32 s34, s34, s35
    s_cselect_b32 s35, s37, s36
    s_cmp_eq_u32 s35, 0
    s_cselect_b32 s24, s6, s8
    s_cselect_b32 s25, s7, s9
    s_mov_b32 s26, {576*1152}
    s_mov_b32 s27, 0x00020000
    s_lshl_b32 s32, s32, 5
    s_add_u32 s34, s34, s32
    v_bfe_u32 v1, v0, 3, 2
    v_lshrrev_b32 v{WJ+4}, 1, v1
    v_mul_u32_u24 v{WJ+4}, 18, v{WJ+4}
    v_and_b32 v{WJ+5}, 1, v1
    v_lshl_add_u32 v{WJ+4}, v{WJ+5}, 2, v{WJ+4}
    v_mul_u32_u24 v{WJ+5}, 72, v1
    s_cmp_lt_u32 s31, 32
    s_cselect_b64 vcc, -1, 0
    v_cndmask_b32 v{WJ+4}, v{WJ+5}, v{WJ+4}, vcc
    v_mul_u32_u24 v{WJ+4}, 1152, v{WJ+4}
    v_lshrrev_b32 v1, 5, v0
    v_lshl_add_u32 v{WJ+4}, v1, 4, v{WJ+4}
    v_and_b32 v1, 7, v0
    v_lshl_add_u32 v{WJ+4}, v1, 1, v{WJ+4}
    s_cmp_lt_u32 s30, 1296
    s_cselect_b32 s34, s34, 0
    """)
    for j in range(8):
        jm = (8*(j>>2) + (j&3)) * 1152
        jl = (18*(j>>1) + (j&1)) * 1152
        e("s_cmp_eq_u32 s33, 1")
        e(f"s_mov_b32 s35, {jl}")
        e(f"s_cselect_b32 s35, {jm}, s35")
        e("s_add_u32 s35, s35, s34")
        e(f"buffer_load_ushort v{(WJ+8 if j & 1 else WJ)+(j>>1)}, v{WJ+4}, s[24:27], s35 offen")
    e(f"""
    v_add_u32 v{AKL}, 8192, v{AKL}
    v_and_b32 v1, 31, v0
    v_lshrrev_b32 v{AVT}, 5, v0
    v_mul_u32_u24 v{AVT}, 288, v{AVT}
    v_lshl_add_u32 v{AVT}, v1, 4, v{AVT}
    v_add_u32 v{AVT}, 9216, v{AVT}
    v_mov_b32 v{IDX}, 0xdddddddd
    v_mov_b32 v{QL+1}, 0
    v_mov_b32 v{KL+1}, 0x3f803f80
    s_mov_b32 s28, 0x0003ffff
    s_mov_b32 s29, 0x0003ffff
    """)
    for i in range(8): e(f"v_mov_b32 v{V0+i}, 0x3f803f80")
    for i in range(32): e(f"v_mov_b32 v{O0+i}, 0")
    for i in range(8): e(f"v_mov_b32 v{SB+24+i}, 0")
    def toff(t):
        c, i = divmod(t, 8)
        return c*CHUNK, i
    def rdKM(t):
        c, i = toff(t); return f"ds_read_b128 {vr(KM,4)}, v{AKM} offset:{c + 1024*i}"
    def rdKL(t):
        c, i = toff(t); return f"ds_read_b32 v{KL}, v{AKL} offset:{c + 128*i}"
    def rdV(t, h):
        c, i = toff(t)
        return ("s_mov_b64 exec, s[28:29]\n"
                f"ds_read_b128 {vr(V1 if h else V0,4)}, v{AVT} offset:{c + 1152*i + 576*h}\n"
                "s_mov_b64 exec, -1")
    def m2b(S): return f"v_mfma_f32_32x32x4_2b_bf16 {vr(S,32)}, {vr(KL,2)}, {vr(QL,2)}, 0"
    def qk(S, n): return f"v_mfma_f32_32x32x16_bf16 {vr(S+16*n,16)}, {vr(KM,4)}, {vr(QM1 if n else QM0,4)}, {vr(S+16*n,16)}"
    def pv(S, n, h): return f"v_smfmac_f32_32x32x32_bf16 {vr(O1 if n else O0,16)}, {vr(V1 if h else V0,4)}, {vr(S+16*n+8*h,8)}, v{IDX}"
    def ex(S, a, b): return "\n".join(f"v_exp_f32 v{S+i}, v{S+i}" for i in range(a, b+1))
    def maxtree(dst, S, first):
        L = []
        if first:
            L.append(f"v_max3_f32 v{dst}, v{S}, v{S+1}, v{S+2}")
            rest = list(range(3, 16))
        else:
            rest = list(range(0, 16))
        while rest:
            a = rest.pop(0)
            b = rest.pop(0) if rest else a
            L.append(f"v_max3_f32 v{dst}, v{dst}, v{S+a}, v{S+b}")
        return "\n".join(L)
    stamp(e, 1)
    e("s_waitcnt vmcnt(25)")
    e("s_barrier")
    stamp(e, 2)
    e(rdKL(0)); e(rdKM(0))
    e("s_waitcnt lgkmcnt(0)")
    e(m2b(SA))
    e("s_nop 15\ns_nop 3")
    e(qk(SA, 0)); e(qk(SA, 1))
    e("s_nop 15")
    e(maxtree(WJ+6, SA, True)); e(maxtree(WJ+7, SA+16, True))
    e(f"""
    s_nop 1
    v_permlane32_swap_b32 v{WJ+6}, v{WJ+7}
    s_nop 1
    v_max_f32 v{WJ+6}, v{WJ+6}, v{WJ+7}
    v_cvt_pk_bf16_f32 v{QL+1}, -v{WJ+6}, 0
    s_nop 1
    """)
    stamp(e, 3)
    e(m2b(SA))
    e(rdKL(1))
    e("s_nop 15\ns_nop 2")
    e(qk(SA, 0)); e(qk(SA, 1))
    e(rdKM(1)); e(rdV(0, 0))
    e("s_mov_b32 s18, 0")
    e("s_nop 9")
    e(".p2align 6")
    e("K2_LOOP:")
    for t in range(8):
        cur, nxt = (SA, SB) if t % 2 == 0 else (SB, SA)
        if t == 6:
            e("""
            s_cmp_eq_u32 s18, 0
            s_cbranch_scc1 K2_SYNC0
            s_cmp_eq_u32 s18, 3
            s_cbranch_scc1 K2_SYNC1
            K2_SYNC_RET:
            """)
        e(ex(cur, 0, 1))
        e(pv(nxt, 1, 1))
        e(rdV(t, 1))
        e(ex(cur, 2, 4))
        e("s_waitcnt lgkmcnt(3)")
        e(m2b(nxt))
        e(rdKL(t+2))
        e(ex(cur, 5, 12))
        e("s_waitcnt lgkmcnt(2)")
        e(pv(cur, 0, 0))
        e(ex(cur, 13, 17))
        e("s_waitcnt lgkmcnt(1)")
        e(pv(cur, 0, 1))
        e(ex(cur, 18, 20))
        e(qk(nxt, 0))
        e(ex(cur, 21, 23))
        e(qk(nxt, 1))
        e(rdKM(t+2))
        e(ex(cur, 24, 26))
        e(pv(cur, 1, 0))
        e(rdV(t+1, 0))
        if t == 7:
            e(f"""
            v_add_u32 v{AKM}, {CHUNK}, v{AKM}
            v_add_u32 v{AKL}, {CHUNK}, v{AKL}
            v_add_u32 v{AVT}, {CHUNK}, v{AVT}
            s_add_u32 s18, s18, 1
            s_cmp_lt_u32 s18, 8
            """)
        e(ex(cur, 27, 31))
    e("s_cbranch_scc1 K2_LOOP")
    e("s_nop 1")
    e(pv(SB, 1, 1))
    e("s_mov_b32 s19, 0")
    e("s_waitcnt lgkmcnt(0)")
    stamp(e, 4)
    e("s_nop 10")
    e("K2_FIN:")
    e("s_cmp_lg_u32 s19, 0")
    e("s_cbranch_scc1 K2_OUT")
    T = SA
    e(f"v_max_f32 v{T}, v{O0+10}, v{O1+10}")
    e(f"v_mov_b32 v{T+1}, 0")
    for i in range(11):
        e(f"v_fmac_f32 v{T}, v{O0+i}, v{T+1}")
        e(f"v_fmac_f32 v{T}, v{O1+i}, v{T+1}")
    e(f"""
    v_mov_b32 v{T+1}, 0x4e800000
    v_cmp_nlt_f32 vcc, v{T}, v{T+1}
    s_nop 4
    s_cmp_lg_u64 vcc, 0
    s_cbranch_scc1 K2_SLOW
    K2_OUT:
    s_cmp_lt_u32 s10, 32
    s_cbranch_scc1 K2_GA
    v_sub_f32 v{G0}, 1.0, v{G0}
    v_sub_f32 v{G1}, 1.0, v{G1}
    K2_GA:
    v_rcp_f32 v{T}, v{O0+10}
    v_rcp_f32 v{T+1}, v{O1+10}
    s_nop 0
    v_mul_f32 v{T}, v{T}, v{G0}
    v_mul_f32 v{T+1}, v{T+1}, v{G1}
    """)
    for n, O in enumerate((O0, O1)):
        for i in range(10):
            e(f"v_mul_f32 v{O+i}, v{O+i}, v{T+n}")
        for i in range(5):
            e(f"v_cvt_pk_bf16_f32 v{T+4+8*n+i}, v{O+2*i}, v{O+2*i+1}")
    e(f"""
    v_bfe_u32 v{T+2}, v0, 4, 1
    v_mul_u32_u24 v{T+2}, {36*1024}, v{T+2}
    v_and_b32 v{T+3}, 15, v0
    v_lshl_add_u32 v{T+2}, v{T+3}, 4, v{T+2}
    v_lshrrev_b32 v{T+3}, 5, v0
    v_lshl_add_u32 v{T+20}, v{T+3}, 8, v{T+2}
    v_mov_b32 v{T+21}, 0x7ffffff0
    v_cmp_eq_u32 vcc, 0, v{T+3}
    s_mul_i32 s16, s14, {72*1024}
    s_add_u32 s16, s16, {O_OFF}
    v_cndmask_b32 v{T+21}, v{T+21}, v{T+2}, vcc
    s_lshl_b32 s17, s10, 9
    s_add_u32 s17, s17, s16
    s_lshr_b32 s30, s10, 2
    s_lshl_b32 s30, s30, 8
    s_and_b32 s31, s10, 3
    s_lshl_b32 s31, s31, 2
    s_add_u32 s30, s30, s31
    s_add_u32 s30, s30, s16
    s_add_u32 s30, s30, {32*1024}
    buffer_store_dwordx4 {vr(T+4,4)}, v{T+20}, s[20:23], s17 offen
    buffer_store_dword v{T+8}, v{T+21}, s[20:23], s30 offen
    s_add_u32 s17, s17, {72*1024}
    s_add_u32 s30, s30, {72*1024}
    buffer_store_dwordx4 {vr(T+12,4)}, v{T+20}, s[20:23], s17 offen
    buffer_store_dword v{T+16}, v{T+21}, s[20:23], s30 offen
    """)
    if PROF: e("s_waitcnt vmcnt(0)")
    stamp(e, 5); stamp_rt(e, 7)
    stamp_out(e, 1, "s3", 20)
    e("K2_END:\ns_endpgm")
    e(f"""
    K2_SYNC0:
    s_waitcnt vmcnt(17)
    s_barrier
    s_branch K2_SYNC_RET
    K2_SYNC1:
    s_waitcnt vmcnt(0)
    s_barrier
    s_lshl_b32 s30, s30, 10
    s_add_u32 s30, s30, {WF_OFF}
    s_cmp_lt_u32 s30, {WF_OFF + 1296*1024}
    s_cbranch_scc0 K2_SYNC_RET
    v_lshlrev_b32 v{WJ+4}, 4, v0
    v_lshl_or_b32 v{WJ}, v{WJ+8}, 16, v{WJ}
    v_lshl_or_b32 v{WJ+1}, v{WJ+9}, 16, v{WJ+1}
    v_lshl_or_b32 v{WJ+2}, v{WJ+10}, 16, v{WJ+2}
    v_lshl_or_b32 v{WJ+3}, v{WJ+11}, 16, v{WJ+3}
    buffer_store_dwordx4 {vr(WJ,4)}, v{WJ+4}, s[20:23], s30 offen
    s_branch K2_SYNC_RET
    """)
    M0, M1 = WJ+6, WJ+7
    def rewind():
        e(f"""
        v_subrev_u32 v{AKM}, {8*CHUNK}, v{AKM}
        v_subrev_u32 v{AKL}, {8*CHUNK}, v{AKL}
        v_subrev_u32 v{AVT}, {8*CHUNK}, v{AVT}
        s_mov_b32 s18, 0
        """)
    def advance():
        e(f"""
        s_add_u32 s18, s18, 1
        s_and_b32 s16, s18, 7
        s_cmp_eq_u32 s16, 0
        s_mov_b32 s17, 1024
        s_cselect_b32 s16, {CHUNK-7*1024}, s17
        v_add_u32 v{AKM}, s16, v{AKM}
        s_mov_b32 s17, 128
        s_cselect_b32 s16, {CHUNK-7*128}, s17
        v_add_u32 v{AKL}, s16, v{AKL}
        s_mov_b32 s17, 1152
        s_cselect_b32 s16, {CHUNK-7*1152}, s17
        v_add_u32 v{AVT}, s16, v{AVT}
        s_cmp_lt_u32 s18, 64
        """)
    def scores():
        e(rdKL(0)); e(rdKM(0))
        e("s_waitcnt lgkmcnt(0)")
        e(m2b(SA))
        e("s_nop 15\ns_nop 3")
        e(qk(SA, 0)); e(qk(SA, 1))
        e("s_nop 15")
    e("K2_SLOW:")
    e(f"v_mov_b32 v{QL+1}, 0")
    e(f"v_mov_b32 v{M0}, 0xff800000")
    e(f"v_mov_b32 v{M1}, 0xff800000")
    rewind()
    e("K2_SLOW_A:")
    scores()
    e(maxtree(M0, SA, False)); e(maxtree(M1, SA+16, False))
    advance()
    e("s_cbranch_scc1 K2_SLOW_A")
    for M in (M0, M1):
        e(f"""
        v_mov_b32 v{WJ+5}, v{M}
        s_nop 1
        v_permlane32_swap_b32 v{M}, v{WJ+5}
        s_nop 1
        v_max_f32 v{M}, v{M}, v{WJ+5}
        """)
    for i in range(32): e(f"v_mov_b32 v{O0+i}, 0")
    rewind()
    e("K2_SLOW_B:")
    e(rdV(0, 0)); e(rdV(0, 1))
    scores()
    for i in range(32):
        e(f"v_sub_f32 v{SA+i}, v{SA+i}, v{M0 if i < 16 else M1}")
    e(ex(SA, 0, 31))
    e("s_nop 1")
    for n in range(2):
        for h in range(2):
            e(pv(SA, n, h))
    advance()
    e("s_cbranch_scc1 K2_SLOW_B")
    e("s_mov_b32 s19, 1")
    e("s_nop 15")
    e("s_branch K2_FIN")

def gen_k3(e):
    khead(e, "oproj_kernel")
    e("""
    s_cmp_ge_u32 s2, 256
    s_cbranch_scc1 K3_END
    s_load_dwordx2 s[4:5], s[0:1], 88
    s_load_dwordx2 s[6:7], s[0:1], 72
    v_lshrrev_b32 v1, 6, v0
    v_and_b32 v0, 63, v0
    s_and_b32 s10, s2, 3
    v_readfirstlane_b32 s3, v1
    s_lshl_b32 s10, s10, 3
    s_bfe_u32 s11, s2, 0x30003
    s_add_u32 s10, s10, s11
    s_bfe_u32 s11, s2, 0x10002
    s_lshl_b32 s11, s11, 2
    s_lshr_b32 s12, s2, 6
    s_add_u32 s11, s11, s12
    """)
    stamp(e, 0); stamp_rt(e, 6)
    e(f"""
    s_mul_i32 s12, s10, {4*36*1024}
    s_mul_i32 s13, s3, {9*1024}
    s_add_u32 s12, s12, s13
    s_add_u32 s12, s12, {O_OFF}
    s_mul_i32 s13, s3, {9*72*512}
    s_mul_i32 s14, s11, {9*512}
    s_add_u32 s13, s13, s14
    s_add_u32 s13, s13, {WF_OFF}
    v_lshlrev_b32 v1, 4, v0
    v_lshrrev_b32 v3, 4, v0
    v_lshlrev_b32 v3, 7, v3
    v_and_b32 v2, 7, v0
    v_lshl_add_u32 v3, v2, 4, v3
    v_bfe_u32 v2, v0, 3, 1
    v_lshl_add_u32 v2, v2, 9, v3
    s_waitcnt lgkmcnt(0)
    """)
    srd(e, 20, 4, 5, WS_SIZE)
    srd(e, 24, 6, 7, X_BYTES)
    def base(ks): return 4 + 36 * (ks % 7)
    def loads(ks):
        b = base(ks)
        for a in range(4):
            e(f"s_add_u32 s16, s12, {a*36*1024 + ks*1024}")
            e(f"buffer_load_dwordx4 {vr(b+4*a,4)}, v1, s[20:23], s16 offen")
        e(f"s_add_u32 s16, s13, {ks*72*512}")
        for t in range(4):
            e(f"buffer_load_dwordx4 {vr(b+16+4*t,4)}, v2, s[20:23], s16 offen offset:{1024*t}")
        e(f"s_add_u32 s16, s13, {ks*72*512 + 4096}")
        e(f"buffer_load_dwordx4 {vr(b+32,4)}, v3, s[20:23], s16 offen")
    for ks in range(7): loads(ks)
    stamp(e, 1)
    for ks in range(9):
        b = base(ks)
        issued = min(9, 7 + ks)
        e(f"s_waitcnt vmcnt({9*(issued - ks - 1)})")
        if ks == 0: stamp(e, 2)
        for t in range(5):
            for a in range(4):
                d = ar(4*(5*a+t), 4)
                c = "0" if ks == 0 else d
                e(f"v_mfma_f32_16x16x32_bf16 {d}, {vr(b+16+4*t,4)}, {vr(b+4*a,4)}, {c}")
        if ks + 7 < 9: loads(ks + 7)
    stamp(e, 3)
    e(f"""
    s_mul_i32 s16, s3, 5120
    v_add_u32 v4, s16, v1
    s_mul_i32 s16, s3, 20480
    v_add_u32 v5, s16, v1
    s_nop 7
    """)
    for a in range(4):
        for t in range(5):
            off = a*20480 + t*1024
            if off < 65536:
                e(f"ds_write_b128 v4, {ar(4*(5*a+t),4)} offset:{off}")
            else:
                e(f"v_add_u32 v6, 65536, v4")
                e(f"ds_write_b128 v6, {ar(4*(5*a+t),4)} offset:{off-65536}")
        if a == 1: e("s_waitcnt lgkmcnt(4)")
    e("s_waitcnt lgkmcnt(0)")
    e("s_barrier")
    for t in range(5):
        for w in range(4):
            e(f"ds_read_b128 {vr(8+16*t+4*w,4)}, v5 offset:{w*5120+t*1024}")
        if t == 2: e("s_waitcnt lgkmcnt(4)")
    e(f"""
    s_lshl_b32 s16, s10, 6
    s_lshl_b32 s17, s3, 4
    s_add_u32 s16, s16, s17
    s_mul_i32 s16, s16, 1152
    s_mul_i32 s17, s11, 144
    s_add_u32 s16, s16, s17
    v_and_b32 v2, 15, v0
    v_mul_u32_u24 v2, 1152, v2
    v_lshrrev_b32 v3, 4, v0
    v_lshl_add_u32 v2, v3, 3, v2
    v_mov_b32 v6, 0x7ffffff0
    v_cmp_gt_u32 vcc, 2, v3
    s_waitcnt lgkmcnt(0)
    v_cndmask_b32 v6, v6, v2, vcc
    """)
    for t in range(5):
        b = 8 + 16*t
        for r in range(4):
            e(f"v_add_f32 v{b+r}, v{b+r}, v{b+4+r}")
            e(f"v_add_f32 v{b+8+r}, v{b+8+r}, v{b+12+r}")
        for r in range(4):
            e(f"v_add_f32 v{b+r}, v{b+r}, v{b+8+r}")
        e(f"v_cvt_pk_bf16_f32 v{b+4}, v{b}, v{b+1}")
        e(f"v_cvt_pk_bf16_f32 v{b+5}, v{b+2}, v{b+3}")
        e(f"buffer_store_dwordx2 {vr(b+4,2)}, v{6 if t == 4 else 2}, s[24:27], s16 offen offset:{32*t}")
    stamp(e, 4)
    if PROF: e("s_waitcnt vmcnt(0)")
    stamp(e, 5); stamp_rt(e, 7)
    stamp_out(e, 2, "s3", 20)
    e("K3_END:")
    e("s_endpgm")

def main(out):
    ref = open(f"cdna_kernels/{NAME}.s.ref").read().split("\n")
    hdr = [l for l in ref if l.startswith(";") and "@launch" not in l and "Override launch" not in l and "grid=ceil" not in l]
    e = Em()
    gen_k1(e); gen_k2(e); gen_k3(e)
    txt = "\n".join(hdr) + "\n"
    txt += "; @launch kernel=proj_kernel grid=(256,1,1) block=(512,1,1) lds=147456\n"
    txt += "; @launch kernel=attn_kernel grid=(256,1,1) block=(512,1,1) lds=163840\n"
    txt += "; @launch kernel=oproj_kernel grid=(256,1,1) block=(256,1,1) lds=81920\n"
    txt += '.amdgcn_target "amdgcn-amd-amdhsa--gfx950"\n.text\n'
    body = e.text()
    fl = os.environ.get("STFLAG", "")
    if fl:
        body = "\n".join((l + " " + fl if l.strip().startswith("buffer_store") else l) for l in body.split("\n"))
    txt += body
    txt += '.section .rodata,"a"\n'
    txt += kdesc("proj_kernel", 152, 152)
    txt += kdesc("attn_kernel", 140, 140)
    txt += kdesc("oproj_kernel", 256+80, 256)
    open(out, "w").write(txt)

if __name__ == "__main__":
    main(sys.argv[1] if len(sys.argv) > 1 else f"cdna_kernels/{NAME}.s")
```
